```python
import torch

def _softmax(x, axis=-1):
    return torch.softmax(x, dim=axis)

def _gelu(x):
    return torch.nn.functional.gelu(x, approximate='tanh')

def _silu(x):
    return torch.nn.functional.silu(x)

def _sigmoid(x):
    return torch.sigmoid(x)

def _layernorm(x, axis=-1, eps=1e-05):
    m = x.mean(dim=axis, keepdim=True)
    v = x.var(dim=axis, keepdim=True, unbiased=False)
    return (x - m) / torch.sqrt(v + eps)

def _scatter_add(tgt, idx, src, axis=0):
    return tgt.clone().index_add_(axis, idx, src)

def _segment_sum(src, seg, n):
    out = torch.zeros((n,) + src.shape[1:], dtype=src.dtype)
    return out.index_add_(0, seg, src)

def _pad(x, pw):
    flat = tuple((v for pair in reversed(pw) for v in pair))
    return torch.nn.functional.pad(x, flat)
kernel_name = 'parallel_sum__ssm_conv_h3__mixer_gmlp__prompt'

def setup_inputs():

    _w = lambda a: (lambda t: t.to(torch.bfloat16) if t.is_floating_point() else t)(torch.as_tensor(a))

    def _A_setup():
        B, S, D = (1, 2048, 1024)
        ks = 4
        return {'q': _w((lambda *s: torch.randn(*s, dtype=torch.bfloat16) * 0.05)(B, S, D)), 'k': _w((lambda *s: torch.randn(*s, dtype=torch.bfloat16) * 0.8)(B, S, D)), 'v': _w((lambda *s: torch.randn(*s, dtype=torch.bfloat16) * 0.8)(B, S, D)), 'shift_k': _w((lambda *s: torch.randn(*s, dtype=torch.bfloat16) * 0.8)(D, ks) * 0.5), 'ssm_k': _w((lambda *s: torch.randn(*s, dtype=torch.bfloat16) * 3.2)(D, S) * (1.0 / S ** 0.5)), 'ssm_D': _w((lambda *s: torch.randn(*s, dtype=torch.bfloat16) * 0.8)(D))}
    _A_in = _A_setup()

    def _B_setup():
        B, S, D, F = (1, 2048, 1024, 3584)
        Fh = F // 2
        return {'x': _w((lambda *s: torch.randn(*s, dtype=torch.bfloat16) * 0.05)(B, S, D)), 'w_in': _w((lambda *s: torch.randn(*s, dtype=torch.bfloat16) * 0.4)(D, 2 * Fh)), 'w_sp': _w(0.01 * (lambda *s: torch.randn(*s, dtype=torch.bfloat16) * 0.4)(S, S)), 'b_sp': _w(1.0 + 0.01 * (lambda *s: torch.randn(*s, dtype=torch.bfloat16) * 0.05)(S)), 'w_out': _w((lambda *s: torch.randn(*s, dtype=torch.bfloat16) * 0.05)(Fh, D))}
    _B_in = _B_setup()
    return {'A_q': _A_in['q'], 'A_k': _A_in['k'], 'A_v': _A_in['v'], 'A_shift_k': _A_in['shift_k'], 'A_ssm_k': _A_in['ssm_k'], 'A_ssm_D': _A_in['ssm_D'], 'B_x': _B_in['x'], 'B_w_in': _B_in['w_in'], 'B_w_sp': _B_in['w_sp'], 'B_b_sp': _B_in['b_sp'], 'B_w_out': _B_in['w_out']}

def reference(A_q, A_k, A_v, A_shift_k, A_ssm_k, A_ssm_D, B_x, B_w_in, B_w_sp, B_b_sp, B_w_out):

    def _A_ref(q, k, v, shift_k, ssm_k, ssm_D):
        B, S, D = q.shape
        ks = shift_k.shape[-1]
        k_pad = _pad(k, ((0, 0), (ks - 1, 0), (0, 0)))
        k_shift = torch.zeros_like(k)
        for t in range(ks):
            k_shift = k_shift + k_pad[:, t:t + S, :] * shift_k[:, ks - 1 - t][None, None, :]
        kv = k_shift * v
        L = 2 * S
        kv_pad = _pad(kv, ((0, 0), (0, S), (0, 0)))
        kf_pad = _pad(ssm_k, ((0, 0), (0, S)))
        kv_f = (lambda x, axes=(-2, -1): torch.fft.rfft2(x.float(), dim=axes))(kv_pad[:, None, :, :], axes=(1, 2))
        kf_f = (lambda x, axes=(-2, -1): torch.fft.rfft2(x.float(), dim=axes))(kf_pad[:, None, :], axes=(1, 2))
        kf_f = (lambda x, *d: x.permute(*d))(kf_f, 1, 2, 0)
        y_f = kv_f * kf_f[None, :, :, :]
        y = (lambda x, s, axes=(-2, -1): torch.fft.irfft2(x, s=s, dim=axes).to(torch.bfloat16))(y_f, (1, L), axes=(1, 2))[:, 0, :S, :]
        y = y + kv * ssm_D[None, None, :]
        return q * y

    def _B_ref(x, w_in, w_sp, b_sp, w_out):
        B, S, D = x.shape
        F = w_in.shape[-1]
        Fh = F // 2
        z = _gelu(torch.einsum('bsd,df->bsf', x, w_in))
        z1 = z[..., :Fh].clone()
        z2 = _layernorm(z[..., Fh:], axis=-1)
        g = torch.einsum('ts,bsf->btf', w_sp, z2) + b_sp[None, :, None]
        return torch.einsum('bsf,fd->bsd', z1 * g, w_out)
    x = A_q
    xn = _layernorm(x, axis=-1)
    return x + _A_ref(xn, A_k, A_v, A_shift_k, A_ssm_k, A_ssm_D) + _B_ref(xn, B_w_in, B_w_sp, B_b_sp, B_w_out)
```

```python
from common import *
def assemble(parts):
    s = "\n".join(p[0] for p in parts) + "\n"
    s += '.amdgcn_target "amdgcn-amd-amdhsa--gfx950"\n'
    seen = set()
    for p in parts:
        if p[1] not in seen:
            s += p[1]; seen.add(p[1])
    return s
```

```python
NAME = "parallel_sum__ssm_conv_h3__mixer_gmlp__prompt"
KA = dict(x=0, k=8, v=16, shk=24, ssmk=32, ssmd=40, bx=48, win=56, wsp=64, bsp=72, wout=80, out=88, dbg=96, ws=104)
WS_XN  = 0x0000000
WS_KVR = 0x0800000
WS_ST1 = 0x0700000
WS_PART= 0x0710000
WS_CNT = 0x0760000
WS_Z1  = 0x1000000
WS_Z2P = 0x1800000
WS_Z2N = 0x2000000
WS_YT  = 0x2800000
WS_P   = 0x3000000
WS_TS  = 0x3800000
KVR_PITCH = 4224

class Asm:
    def __init__(self):
        self.L = []
    def __call__(self, s):
        if isinstance(s, (list, tuple)):
            for x in s: self(x)
            return
        for ln in s.split("\n"):
            ln = ln.strip()
            if ln: self.L.append(ln)
    def text(self):
        out = []
        for ln in self.L:
            if ln.endswith(":") or ln.startswith(".") or ln.startswith(";"):
                out.append(ln)
            else:
                out.append("    " + ln)
        return "\n".join(out) + "\n"

def weave(mf, fill, start=0, per=1, stop=None):
    out = []; fi = 0
    n = len(mf)
    for g, m in enumerate(mf):
        out.append(m)
        if g >= start:
            for _ in range(per):
                if fi < len(fill):
                    f = fill[fi]; fi += 1
                    out += f if isinstance(f, list) else [f]
    while fi < len(fill):
        f = fill[fi]; fi += 1
        out += f if isinstance(f, list) else [f]
    return out

def weave_at(mf, slots):
    out = list(slots.get(-1, []))
    for g, m in enumerate(mf):
        out.append(m)
        out += slots.get(g, [])
    return out

def header(name):
    return f".text\n.globl {name}\n.p2align 8\n.type {name},@function\n{name}:"

def kd(name, vgpr=256, accum=None, sgpr=96):
    if accum is None: accum = min(256, (vgpr + 3) // 4 * 4)
    return f""".section .rodata,"a"
.p2align 6
.amdhsa_kernel {name}
  .amdhsa_next_free_vgpr {vgpr}
  .amdhsa_next_free_sgpr {sgpr}
  .amdhsa_accum_offset {accum}
  .amdhsa_group_segment_fixed_size 0
  .amdhsa_kernarg_size 112
  .amdhsa_user_sgpr_count 2
  .amdhsa_user_sgpr_kernarg_segment_ptr 1
  .amdhsa_system_sgpr_workgroup_id_x 1
.end_amdhsa_kernel
.text"""

def srd(a, d, lo, hi, nrec, add=None):
    if add is None:
        a(f"s_mov_b32 s{d}, s{lo}\ns_and_b32 s{d+1}, s{hi}, 0xffff")
    else:
        a(f"s_add_u32 s{d}, s{lo}, {add}\ns_addc_u32 s{d+1}, s{hi}, 0\ns_and_b32 s{d+1}, s{d+1}, 0xffff")
    a(f"s_mov_b32 s{d+2}, {nrec}\ns_mov_b32 s{d+3}, 0x20000")

def ts_begin(a, on):
    if on: a("s_memrealtime s[90:91]")

def ts_end(a, on, kidx, wsreg, wave_sgpr, tmpv=(0, 1, 2, 3, 4)):
    if not on: return
    v = tmpv
    a("s_memrealtime s[92:93]")
    srd(a, 84, wsreg, wsreg + 1, 0x100000, add=hex(WS_TS))
    a(f"""s_lshl_b32 s88, s2, 3
s_add_u32 s88, s88, s{wave_sgpr}
s_add_u32 s88, s88, {kidx * 2048}
s_lshl_b32 s88, s88, 4
s_waitcnt lgkmcnt(0)
v_mov_b32 v{v[0]}, s90
v_mov_b32 v{v[1]}, s91
v_mov_b32 v{v[2]}, s92
v_mov_b32 v{v[3]}, s93
v_mov_b32 v{v[4]}, s88
s_mov_b64 exec, 1
buffer_store_dwordx4 v[{v[0]}:{v[3]}], v{v[4]}, s[84:87], 0 offen
s_waitcnt vmcnt(0)""")

class Stamps:
    def __init__(self, a, on, kidx, wsreg, wave_sgpr):
        self.a, self.on, self.k, self.ws, self.w = a, on, kidx, wsreg, wave_sgpr
    def mark(self, n):
        if self.on: self.a(f"s_memrealtime s[{60+2*n}:{61+2*n}]")
    def flush(self, nmarks, v=0):
        if not self.on: return
        a = self.a
        srd(a, 84, self.ws, self.ws + 1, 0x400000, add=hex(WS_TS + 0x200000))
        a(f"""s_lshl_b32 s88, s2, 3
s_add_u32 s88, s88, s{self.w}
s_add_u32 s88, s88, {self.k * 2048}
s_lshl_b32 s88, s88, 6
s_waitcnt lgkmcnt(0)
s_mov_b64 exec, 1
v_mov_b32 v{v+1}, s88""")
        for n in range(nmarks):
            a(f"v_mov_b32 v{v}, s{60+2*n}\nbuffer_store_dword v{v}, v{v+1}, s[84:87], 0 offen offset:{4*n}\ns_waitcnt vmcnt(0)")
```

```python
from common import *
def conv_helper(a, name, opt, st):
    ysc = opt.get('ysc', '')
    ACC = 16
    FT = (48, 112); FH = (80, 144)
    VB7, VT0, VT1, VH, VXO, VD = 2, 3, 4, 5, 6, 7
    VDC = 8
    VDH, VYO, VMH = 12, 13, 14
    MK = 176
    AD = 180
    T = 184
    a(f"""s_load_dwordx4 s[36:39], s[0:1], {KA['ssmk']}
s_lshl_b32 s12, s14, 2
s_add_u32 s12, s12, s15
s_sub_u32 s12, s12, 28
s_lshl_b32 s12, s12, 5
s_add_u32 s12, s12, s3
s_mul_i32 s13, s3, 20480
v_lshrrev_b32 v{T}, 4, v0
v_and_b32 v{T+1}, 15, v0
v_lshlrev_b32 v{VDH}, 4, v0""")
    for c in range(4): a(f"v_xor_b32 v{VDC+c}, {c<<6}, v{VDH}\nv_add_u32 v{VDC+c}, {6-2*c}, v{VDC+c}")
    a(f"""v_lshrrev_b32 v{T+2}, 2, v{T+1}
v_lshlrev_b32 v{T+2}, 3, v{T+2}
v_lshlrev_b32 v{T+3}, 4, v{T}
v_sub_u32 v{T+3}, v{T+3}, v{T+2}
v_add_u32 v{T+4}, 24, v{T+3}
v_and_b32 v{T+2}, 3, v0
v_lshlrev_b32 v{VXO}, 6, v{T+2}
v_lshl_add_u32 v{T+5}, v{T+2}, 12, s13
v_cmp_gt_i32 s[56:57], 40, v{T+3}
v_cmp_gt_i32 s[58:59], 32, v{T+3}""")
    a(f"""v_lshlrev_b32 v{T+6}, 5, v{T+1}
v_lshl_add_u32 v{T+6}, v{T}, 4, v{T+6}
v_add_u32 v{VMH}, -480, v{T+6}
s_add_u32 s16, s13, 16384
v_add_u32 v{T+7}, s16, v{VMH}""")
    a(f"""v_and_b32 v{T+8}, 1, v{T}
v_lshlrev_b32 v{T+8}, 4, v{T+8}
v_lshlrev_b32 v{T+9}, 5, v{T+1}
v_sub_u32 v{T+8}, v{T+8}, v{T+9}
v_add_u32 v{T+8}, 480, v{T+8}
v_xor_b32 v{T+8}, 192, v{T+8}
s_add_u32 s16, s13, 12288
v_add_u32 v{VD}, s16, v{T+8}""")
    a(f"""v_sub_u32 v{T+8}, 15, v{T+1}
v_lshlrev_b32 v{T+9}, 3, v{T}
v_sub_u32 v{T+8}, v{T+8}, v{T+9}
v_mov_b32 v{T+9}, 0xffff
v_mov_b32 v{T+10}, 0xffff0000""")
    for r in range(4):
        a(f"""v_cmp_eq_u32 vcc, {2*r}, v{T+8}
v_cndmask_b32 v{MK+r}, 0, v{T+9}, vcc
v_cmp_eq_u32 vcc, {2*r+1}, v{T+8}
v_cndmask_b32 v{MK+r}, v{MK+r}, v{T+10}, vcc""")
    a(f"""v_and_b32 v{T+8}, 1, v{T}
v_lshlrev_b32 v{T+8}, 9, v{T+8}
v_lshl_add_u32 v{T+8}, v{T+1}, 5, v{T+8}
v_lshrrev_b32 v{T+9}, 1, v{T}
v_lshl_add_u32 v{VYO}, v{T+9}, 4, v{T+8}
s_waitcnt lgkmcnt(0)""")
    srd(a, 20, 10, 11, 1024 * KVR_PITCH, add=hex(WS_KVR))
    srd(a, 24, 36, 37, 4194304)
    srd(a, 28, 10, 11, 4194304, add=hex(WS_YT))
    a(f"s_cmp_ge_u32 s3, 4\ns_cbranch_scc1 {name}_np\ns_setprio 1\n{name}_np:")
    a(f"s_mov_b32 s17, 4\n{name}_ch:")
    a(f"""s_mul_i32 s18, s12, {KVR_PITCH}
s_lshl_b32 s19, s12, 12
s_lshr_b32 s32, s12, 1
s_lshl_b32 s32, s32, 2
s_load_dword s33, s[38:39], s32""")
    for c in range(4):
        a(f"s_add_u32 m0, s13, {c*4096}\ns_nop 0")
        for n in range(4): a(f"buffer_load_dwordx4 v{VDC+c}, s[20:23], s18 offen offset:{n*1024} lds")
    a(f"s_add_u32 m0, s13, 16384\ns_nop 0")
    for n in range(4): a(f"buffer_load_dwordx4 v{VDH}, s[24:27], s19 offen offset:{n*1024} lds")
    a(f"""v_mov_b32 v{VB7}, v{T+4}
v_mov_b32 v{VH}, v{T+7}
v_xad_u32 v{VT0}, v{VB7}, v{VXO}, v{T+5}
v_add_u32 v{VT1}, 8, v{VB7}
v_xad_u32 v{VT1}, v{VT1}, v{VXO}, v{T+5}
s_waitcnt lgkmcnt(0)
s_and_b32 s32, s12, 1
s_lshl_b32 s32, s32, 4
s_lshr_b32 s33, s33, s32
s_pack_ll_b32_b16 s33, s33, s33""")
    for r in range(4): a(f"v_and_b32 v{AD+r}, s33, v{MK+r}")
    a("s_waitcnt vmcnt(0)")
    def rd(buf):
        R = []
        for x in range(8):
            h = FH[buf] + 4 * x; t = FT[buf] + 4 * x
            R.append(f"ds_read_b128 v[{h}:{h+3}], v{VH} offset:{512*x}")
            R.append(f"ds_read_b64 v[{t}:{t+1}], v{VT0} offset:{512*(7-x)}")
            R.append(f"ds_read_b64 v[{t+2}:{t+3}], v{VT1} offset:{512*(7-x)}")
        return R
    def adv():
        return [f"v_add_u32 v{VB7}, 64, v{VB7}", f"v_add_u32 v{VH}, 64, v{VH}", f"v_xad_u32 v{VT0}, v{VB7}, v{VXO}, v{T+5}",
                f"v_add_u32 v{VT1}, 8, v{VB7}", f"v_xad_u32 v{VT1}, v{VT1}, v{VXO}, v{T+5}"]
    def mf(buf):
        P = [(I, J) for I in range(8) for J in range(I + 1)]
        P.sort(key=lambda p: (p[1] == 0 or p[0] == p[1]))
        return [f"v_mfma_f32_16x16x32_bf16 v[{ACC+4*I}:{ACC+4*I+3}], v[{FT[buf]+4*(I-J)}:{FT[buf]+4*(I-J)+3}], v[{FH[buf]+4*J}:{FH[buf]+4*J+3}], v[{ACC+4*I}:{ACC+4*I+3}]" for I, J in P]
    def maskH(buf, rho):
        L = [f"v_cmp_le_i32 vcc, {-64*rho}, v{VMH}"] if rho else [f"v_cmp_le_i32 vcc, 0, v{VMH}"]
        L += [f"v_cndmask_b32 v{FH[buf]+r}, 0, v{FH[buf]+r}, vcc" for r in range(4)]
        return L
    for I in range(8): a(f"ds_read_b128 v[{FH[1]+4*I}:{FH[1]+4*I+3}], v{VD} offset:{512*(7-I)}")
    a(rd(0)); a(adv())
    a("s_waitcnt lgkmcnt(15)")
    for I in range(8):
        a(f"v_mfma_f32_16x16x32_bf16 v[{ACC+4*I}:{ACC+4*I+3}], v[{AD}:{AD+3}], v[{FH[1]+4*I}:{FH[1]+4*I+3}], 0")
    for rho in range(8):
        b = rho & 1
        a("s_waitcnt lgkmcnt(0)")
        f = maskH(b, rho)
        if rho == 7:
            f += [f"v_cndmask_b32 v{FT[b]+r}, 0, v{FT[b]+r}, s[{56+2*(r>>1)}:{57+2*(r>>1)}]" for r in range(4)]
            a(weave(mf(b), f, per=2))
        else:
            R = rd(1 - b)
            M = mf(b)
            slots = {}
            for g in range(8): slots[g] = [R[g]] + ([f[g]] if g < len(f) else [])
            for g in range(8, 24): slots[g] = [R[g]]
            A_ = adv()
            for g in range(5): slots[25 + g] = [A_[g]]
            a(weave_at(M, slots))
    a("s_setprio 0")
    O = FT[0]
    a("s_nop 7")
    for I in range(0, 8, 2):
        o = O + 2 * I
        for e in range(2):
            c = ACC + 4 * (I + e)
            a(f"v_cvt_pk_bf16_f32 v{o+2*e}, v{c}, v{c+1}\nv_cvt_pk_bf16_f32 v{o+2*e+1}, v{c+2}, v{c+3}")
    for I in range(0, 8, 2):
        o = O + 2 * I
        a(f"v_permlane16_swap_b32 v{o}, v{o+2}\nv_permlane16_swap_b32 v{o+1}, v{o+3}")
    a("s_nop 1")
    for I in range(0, 8, 2):
        o = O + 2 * I
        a(f"buffer_store_dwordx4 v[{o}:{o+3}], v{VYO}, s[28:31], s19 offen offset:{512*I} {ysc}")
    a(f"s_add_u32 s12, s12, 8\ns_sub_u32 s17, s17, 1\ns_cmp_lg_u32 s17, 0\ns_cbranch_scc1 {name}_ch")
    if opt.get('marks'):
        st.mark(1); a("s_waitcnt vmcnt(0)"); st.mark(2); st.flush(3)
    a("s_endpgm")
```

```python
import sys
sys.path.insert(0, 'gen')
from common import *
from build import assemble
def write(parts, path=None):
    path = path or f"cdna_kernels/{NAME}.s"
    ref = open(f"cdna_kernels/{NAME}.s.ref").read().split("\n")
    head = [l for l in ref if l.startswith(";") and not l.startswith("; @launch") and not l.startswith("; Override") and not l.startswith("; grid=")]
    head = [l for l in head if l.startswith("; Kernarg") or l.startswith(";   offset")]
    open(path, "w").write("\n".join(head) + "\n" + assemble(parts))
    print("wrote", path)
if __name__ == "__main__":
    from k0 import k0
    from km import km
    from kc import kc
    write([k0(dict(kvnt='nt', pf_early=['z2'])), km(dict(hnt='nt', trickle=(-2, 1, 29, 43, 44))), kc()])
```

```python
from common import *
def wave_allsum(a, regs, tmp):
    for dpp in ("quad_perm:[1,0,3,2]", "quad_perm:[2,3,0,1]", "row_half_mirror", "row_mirror"):
        a("s_nop 1")
        for r in regs: a(f"v_add_f32_dpp v{r}, v{r}, v{r} {dpp} row_mask:0xf bank_mask:0xf")
    for sw in ("v_permlane16_swap_b32", "v_permlane32_swap_b32"):
        for r, t in zip(regs, tmp): a(f"v_mov_b32 v{t}, v{r}")
        a("s_nop 1")
        for r, t in zip(regs, tmp): a(f"{sw} v{t}, v{r}")
        a("s_nop 1")
        for r, t in zip(regs, tmp): a(f"v_add_f32 v{r}, v{r}, v{t}")

def k0(opt={}):
    name = opt.get('name', 'k0_kernel'); sc = opt.get('sc', '')
    a = Asm()
    a(header(name))
    a(f"s_cmp_ge_u32 s2, 256\ns_cbranch_scc1 {name}_end")
    st = Stamps(a, opt.get('marks'), 0, 10, 3)
    st.mark(0)
    a(f"""s_load_dwordx4 s[4:7], s[0:1], {KA['x']}
s_load_dwordx4 s[12:15], s[0:1], {KA['v']}
s_load_dwordx2 s[10:11], s[0:1], {KA['ws']}
v_lshrrev_b32 v1, 6, v0
v_and_b32 v2, 63, v0
v_readfirstlane_b32 s3, v1
s_lshr_b32 s16, s2, 3
s_and_b32 s17, s2, 7""")
    for n in range(8): a(f"s_mov_b32 s{48+n}, {n*4096}")
    a(f"""s_lshl_b32 s18, s2, 14
s_lshl_b32 s19, s3, 12
s_add_u32 s18, s18, s19
v_lshlrev_b32 v3, 4, v2
v_add_u32 v3, s18, v3""")
    a(f"""s_lshl_b32 s19, s16, 17
s_lshl_b32 s20, s3, 15
s_add_u32 s19, s19, s20
s_sub_u32 s21, s19, 6144
s_cmp_eq_u32 s19, 0
s_cselect_b32 s21, 0x80000000, s21
s_lshl_b32 s20, s17, 8
s_add_u32 s19, s19, s20
s_add_u32 s21, s21, s20
v_lshlrev_b32 v4, 2, v2
v_add_u32 v5, s21, v4
v_add_u32 v4, s19, v4
s_lshl_b32 s20, s17, 10
v_lshlrev_b32 v6, 4, v2
v_add_u32 v6, s20, v6
s_waitcnt lgkmcnt(0)""")
    srd(a, 24, 4, 5, 4194304); srd(a, 28, 6, 7, 4194304); srd(a, 32, 12, 13, 4194304); srd(a, 36, 14, 15, 8192)
    srd(a, 40, 10, 11, 0x1000000)
    X = 16
    K = 32
    V = 52
    SH = 68
    for r in range(2):
        for c in range(2):
            a(f"buffer_load_dwordx4 v[{X+8*r+4*c}:{X+8*r+4*c+3}], v3, s[24:27], 0 offen offset:{r*2048+c*1024}")
    a(f"buffer_load_dwordx4 v[{SH}:{SH+3}], v6, s[36:39], 0 offen")
    for r in range(3):
        a(f"buffer_load_dword v{K+r}, v5, s[28:31], s{48+(r>>1)} offen offset:{(r&1)*2048}")
    for r in range(16):
        a(f"buffer_load_dword v{K+3+r}, v4, s[28:31], s{48+(r>>1)} offen offset:{(r&1)*2048}")
    for r in range(16):
        a(f"buffer_load_dword v{V+r}, v4, s[32:35], s{48+(r>>1)} offen offset:{(r&1)*2048}")
    a(f"""v_mov_b32 v8, -1
v_mov_b32 v9, -1
v_mov_b32 v10, -1
v_mov_b32 v11, -1
v_mov_b32 v12, 0
v_mov_b32 v13, 0
v_mov_b32 v14, 0
v_mov_b32 v15, 0
s_cmp_lg_u32 s3, 0
s_cbranch_scc1 {name}_p1
s_lshl_b32 s20, s2, 10
s_add_u32 s20, s20, {hex(WS_PART)}
v_lshlrev_b32 v7, 4, v2
buffer_store_dwordx4 v[8:11], v7, s[40:43], s20 offen
{name}_p1:
s_lshl_b32 s20, s2, 2
s_add_u32 s20, s20, s3
s_cmp_lg_u32 s20, 1
s_cbranch_scc1 {name}_p2
s_mov_b32 s20, {hex(WS_CNT)}
v_lshlrev_b32 v7, 7, v2
buffer_store_dword v12, v7, s[40:43], s20 offen
{name}_p2:
s_cmp_lg_u32 s16, 0
s_cbranch_scc1 {name}_p3
s_cmp_lt_u32 s3, 2
s_cbranch_scc1 {name}_p3
s_lshl_b32 s20, s17, 7
s_sub_u32 s20, s20, 128
v_add_u32 v7, s20, v0
v_mul_u32_u24 v7, {KVR_PITCH}, v7
s_mov_b32 s20, {hex(WS_KVR + 4096)}
buffer_store_dwordx4 v[12:15], v7, s[40:43], s20 offen
{name}_p3:""")
    st.mark(1)
    a("s_waitcnt vmcnt(36)")
    F = 72
    for r in range(2):
        for i in range(8):
            a(f"v_lshlrev_b32 v{F+16*r+2*i}, 16, v{X+8*r+i}\nv_and_b32 v{F+16*r+2*i+1}, 0xffff0000, v{X+8*r+i}")
    S = 104
    for r in range(2):
        a(f"v_pk_add_f32 v[{S+2*r}:{S+2*r+1}], v[{F+16*r}:{F+16*r+1}], v[{F+16*r+2}:{F+16*r+3}]")
    for i in range(2, 8):
        for r in range(2):
            a(f"v_pk_add_f32 v[{S+2*r}:{S+2*r+1}], v[{S+2*r}:{S+2*r+1}], v[{F+16*r+2*i}:{F+16*r+2*i+1}]")
    for r in range(2): a(f"v_add_f32 v{S+2*r}, v{S+2*r}, v{S+2*r+1}")
    wave_allsum(a, [S, S+2], [S+1, S+3])
    for r in range(2): a(f"v_mul_f32 v{S+2*r}, {-1/1024}, v{S+2*r}\nv_mov_b32 v{S+2*r+1}, v{S+2*r}")
    for i in range(8):
        for r in range(2):
            a(f"v_pk_add_f32 v[{F+16*r+2*i}:{F+16*r+2*i+1}], v[{F+16*r+2*i}:{F+16*r+2*i+1}], v[{S+2*r}:{S+2*r+1}]")
    Q = 108
    for r in range(2):
        a(f"v_pk_mul_f32 v[{Q+2*r}:{Q+2*r+1}], v[{F+16*r}:{F+16*r+1}], v[{F+16*r}:{F+16*r+1}]")
    for i in range(1, 8):
        for r in range(2):
            a(f"v_pk_fma_f32 v[{Q+2*r}:{Q+2*r+1}], v[{F+16*r+2*i}:{F+16*r+2*i+1}], v[{F+16*r+2*i}:{F+16*r+2*i+1}], v[{Q+2*r}:{Q+2*r+1}]")
    for r in range(2): a(f"v_add_f32 v{Q+2*r}, v{Q+2*r}, v{Q+2*r+1}")
    wave_allsum(a, [Q, Q+2], [Q+1, Q+3])
    a("v_mov_b32 v7, 0x3727c5ac")
    for r in range(2): a(f"v_fmac_f32 v7, {1/1024}, v{Q+2*r}\nv_rsq_f32 v{Q+2*r}, v7\nv_mov_b32 v7, 0x3727c5ac")
    a("s_nop 0")
    for r in range(2): a(f"v_mov_b32 v{Q+2*r+1}, v{Q+2*r}")
    for i in range(8):
        for r in range(2):
            a(f"v_pk_mul_f32 v[{F+16*r+2*i}:{F+16*r+2*i+1}], v[{F+16*r+2*i}:{F+16*r+2*i+1}], v[{Q+2*r}:{Q+2*r+1}]")
    for r in range(2):
        for i in range(8):
            a(f"v_cvt_pk_bf16_f32 v{X+8*r+i}, v{F+16*r+2*i}, v{F+16*r+2*i+1}")
    for r in range(2):
        for c in range(2):
            a(f"buffer_store_dwordx4 v[{X+8*r+4*c}:{X+8*r+4*c+3}], v3, s[40:43], 0 offen offset:{r*2048+c*1024} {sc}")
    a(f"""v_sub_f32 v8, 0, v{S}
v_mov_b32 v9, v{Q}
v_sub_f32 v10, 0, v{S+2}
v_mov_b32 v11, v{Q+2}
s_lshr_b32 s20, s18, 8
s_add_u32 s20, s20, {hex(WS_ST1)}
v_mov_b32 v7, 0
s_mov_b64 exec, 1
buffer_store_dwordx4 v[8:11], v7, s[40:43], s20 offen {sc}
s_mov_b64 exec, -1""")
    st.mark(2)
    a("s_waitcnt vmcnt(21)")
    KF = 72
    SF = 112
    a(f"""v_lshlrev_b32 v{SF}, 16, v{SH}
v_and_b32 v{SF+2}, 0xffff0000, v{SH}
v_lshlrev_b32 v{SF+4}, 16, v{SH+1}
v_and_b32 v{SF+6}, 0xffff0000, v{SH+1}
v_lshlrev_b32 v{SF+1}, 16, v{SH+2}
v_and_b32 v{SF+3}, 0xffff0000, v{SH+2}
v_lshlrev_b32 v{SF+5}, 16, v{SH+3}
v_and_b32 v{SF+7}, 0xffff0000, v{SH+3}""")
    for r in range(19):
        a(f"v_lshlrev_b32 v{KF+2*r}, 16, v{K+r}\nv_and_b32 v{KF+2*r+1}, 0xffff0000, v{K+r}")
    R = 120
    for j in range(4):
        for r in range(16):
            kk = KF + 2 * (r + 3 - j)
            if j == 0: a(f"v_pk_mul_f32 v[{R+2*r}:{R+2*r+1}], v[{kk}:{kk+1}], v[{SF}:{SF+1}]")
            else:      a(f"v_pk_fma_f32 v[{R+2*r}:{R+2*r+1}], v[{kk}:{kk+1}], v[{SF+2*j}:{SF+2*j+1}], v[{R+2*r}:{R+2*r+1}]")
    a("s_waitcnt vmcnt(5)")
    for r in range(16):
        a(f"v_lshlrev_b32 v{KF+2*r}, 16, v{V+r}\nv_and_b32 v{KF+2*r+1}, 0xffff0000, v{V+r}")
    for r in range(16):
        a(f"v_pk_mul_f32 v[{R+2*r}:{R+2*r+1}], v[{R+2*r}:{R+2*r+1}], v[{KF+2*r}:{KF+2*r+1}]")
    O = 32
    for c in range(2):
        for i in range(8):
            a(f"v_cvt_pk_bf16_f32 v{O+8*c+i}, v{R+2*(15-2*i)+c}, v{R+2*(14-2*i)+c}")
    a(f"""s_sub_u32 s20, 3, s3
s_lshl_b32 s20, s20, 1
v_and_b32 v7, 7, v2
v_xor_b32 v7, s20, v7
v_lshlrev_b32 v7, 4, v7
v_lshl_add_u32 v7, v2, 8, v7
v_xor_b32 v8, 16, v7
ds_write_b128 v7, v[{O}:{O+3}]
ds_write_b128 v8, v[{O+4}:{O+7}]
ds_write_b128 v7, v[{O+8}:{O+11}] offset:128
ds_write_b128 v8, v[{O+12}:{O+15}] offset:128
v_lshlrev_b32 v7, 4, v0
v_lshrrev_b32 v8, 3, v0
v_lshrrev_b32 v9, 4, v0
v_xor_b32 v9, v9, v0
v_and_b32 v9, 7, v9
v_lshlrev_b32 v9, 4, v9
v_mul_u32_u24 v8, {KVR_PITCH}, v8
v_add_u32 v8, v8, v9
s_mul_i32 s20, s17, {128*KVR_PITCH}
s_lshl_b32 s21, s16, 7
s_sub_u32 s20, s20, s21
s_add_u32 s20, s20, {hex(WS_KVR + 3968)}
s_waitcnt lgkmcnt(0)
s_barrier""")
    for n in range(4): a(f"ds_read_b128 v[{O+4*n}:{O+4*n+3}], v7 offset:{n*4096}")
    for n in range(4):
        a(f"s_waitcnt lgkmcnt({3-n})")
        a(f"buffer_store_dwordx4 v[{O+4*n}:{O+4*n+3}], v8, s[40:43], s20 offen {sc}")
        if n < 3: a(f"s_add_u32 s20, s20, {32*KVR_PITCH}")
    st.mark(3)
    if opt.get('marks'):
        a("s_waitcnt vmcnt(0)"); st.mark(4); st.flush(5)
    a(f"{name}_end:\ns_endpgm")
    a(kd(name, vgpr=152))
    launch = f"; @launch kernel={name} grid=(256,1,1) block=(256,1,1) lds=16384"
    return launch, a.text()
```

```python
from common import *
SLOT = 24576
XS = 4 * SLOT; YS = 5 * SLOT
def kc_body(a, name, opt, st, mk):
    hsc = opt.get('hsc', '')
    a(f"""s_load_dwordx2 s[4:5], s[0:1], {KA['x']}
s_load_dwordx4 s[56:59], s[0:1], {KA['wout']}
s_and_b32 s12, s14, 3
s_lshl_b32 s12, s12, 2
s_and_b32 s13, s15, 3
s_add_u32 s12, s12, s13
s_lshr_b32 s13, s14, 2
s_lshl_b32 s13, s13, 3
s_lshr_b32 s40, s15, 2
s_add_u32 s13, s13, s40
s_and_b32 s38, s3, 3""")
    VXO = 2
    a(f"""v_lshrrev_b32 v6, 3, v0
v_bfe_u32 v7, v0, 4, 1
s_lshl_b32 s40, s38, 1
v_or_b32 v7, s40, v7
v_and_b32 v1, 7, v0
v_xor_b32 v7, v7, v1
v_lshlrev_b32 v7, 4, v7
s_lshl_b32 s41, s38, 3
v_add_u32 v1, s41, v6
v_lshl_add_u32 v{VXO}, v1, 11, v7
s_lshl_b32 s44, s12, 18
s_lshl_b32 s45, s13, 7
s_add_u32 s44, s44, s45
s_cmp_lt_u32 s3, 4
s_cbranch_scc1 {name}_ccons""")
    VDP, VDW, VDY = 3, 4, 5
    a(f"""s_lshl_b32 s36, s38, 12
v_lshl_add_u32 v{VDP}, v0, 4, s36
v_bfe_u32 v7, v0, 4, 2
v_bfe_u32 v1, v0, 1, 2
v_xor_b32 v7, v7, v1
v_lshlrev_b32 v7, 5, v7
v_and_b32 v1, 1, v0
v_lshl_or_b32 v7, v1, 4, v7
s_lshl_b32 s41, s38, 4
v_add_u32 v1, s41, v6
v_lshl_add_u32 v{VDW}, v1, 11, v7
v_lshrrev_b32 v6, 4, v0
v_lshlrev_b32 v7, 2, v6
v_and_b32 v1, 15, v0
v_xor_b32 v7, v7, v1
v_lshlrev_b32 v7, 4, v7
v_add_u32 v1, s41, v6
v_lshl_add_u32 v{VDY}, v1, 12, v7
s_lshl_b32 s37, s38, 11
s_add_u32 s37, s37, 16384
s_mov_b32 s39, 0
s_mov_b32 s24, {8*2048-1024}
s_mul_i32 s40, s12, {56*8192}
s_add_u32 s40, s40, {hex(WS_P)}
s_waitcnt lgkmcnt(0)""")
    srd(a, 16, 10, 11, 16384, add="s40")
    srd(a, 20, 56, 57, 64*2048, add="s45")
    def dma():
        a("s_add_u32 m0, s36, s39\ns_nop 0")
        for n in range(4): a(f"buffer_load_dwordx4 v{VDP}, s[16:19], 0 offen offset:{n*1024} {hsc} lds")
        a(f"s_add_u32 m0, s37, s39\ns_add_u32 s39, s39, {SLOT}")
        a(f"buffer_load_dwordx4 v{VDW}, s[20:23], 0 offen lds")
        a(f"buffer_load_dwordx4 v{VDW}, s[20:23], s24 offen offset:1024 lds")
        a(f"""s_cmp_eq_u32 s39, {6*SLOT}
s_cselect_b32 s39, 0, s39
s_add_u32 s16, s16, 16384
s_addc_u32 s17, s17, 0
s_add_u32 s20, s20, {64*2048}
s_addc_u32 s21, s21, 0""")
    for s in range(6): dma()
    a("s_waitcnt vmcnt(30)\ns_barrier\ns_waitcnt vmcnt(24)\ns_barrier")
    a(f"s_mov_b32 s42, 22\n{name}_cl:")
    dma()
    a(f"s_waitcnt vmcnt(24)\ns_barrier\ns_sub_u32 s42, s42, 1\ns_cmp_lg_u32 s42, 0\ns_cbranch_scc1 {name}_cl")
    srd(a, 16, 4, 5, 128*2048, add="s44")
    a(f"s_lshl_b32 s40, s38, 10\ns_add_u32 s40, s40, {XS}")
    for m in range(4):
        a(f"s_add_u32 m0, s40, {m*4096}\ns_mov_b32 s41, {m*32*2048}")
        a(f"buffer_load_dwordx4 v{VXO}, s[16:19], s41 offen lds")
    a("s_waitcnt vmcnt(22)\ns_barrier")
    a(f"s_lshl_b32 s40, s13, 18\ns_lshl_b32 s41, s12, 8\ns_add_u32 s40, s40, s41\ns_add_u32 s40, s40, {hex(WS_YT)}")
    srd(a, 16, 10, 11, 64*4096, add="s40")
    a(f"s_add_u32 m0, s36, {YS}")
    for m in range(4):
        a(f"s_mov_b32 s41, {m*(4*4096-1024)}")
        a(f"buffer_load_dwordx4 v{VDY}, s[16:19], s41 offen offset:{m*1024} {hsc} lds")
    a("s_waitcnt vmcnt(20)\ns_barrier\ns_waitcnt vmcnt(14)\ns_barrier\ns_waitcnt vmcnt(8)\ns_barrier\ns_waitcnt vmcnt(0)\ns_barrier")
    a(f"s_branch {name}_cfin")
    a(f"{name}_ccons:")
    VP, VWO, VX, VY = 3, 4, 6, 8
    ACC = 16
    FP = (48, 64); FW = (80, 88)
    RS = 96
    XR = 104; YR = 120; T = 136
    a(f"""s_lshr_b32 s42, s38, 1
s_and_b32 s43, s38, 1
v_lshrrev_b32 v{T}, 4, v0
v_and_b32 v{T+1}, 15, v0
v_lshrrev_b32 v{T+2}, 2, v{T+1}
v_and_b32 v{T+3}, 3, v0
v_lshl_add_u32 v{T+4}, v{T+2}, 3, v{T+3}
s_lshl_b32 s40, s42, 6
v_add_u32 v{T+4}, s40, v{T+4}
s_lshl_b32 s40, s12, 10
s_add_u32 s40, s40, {hex(WS_ST1)}
v_lshlrev_b32 v{T+5}, 3, v{T+4}
s_waitcnt lgkmcnt(0)""")
    srd(a, 16, 10, 11, 1024, add="s40")
    for tt in range(4): a(f"buffer_load_dwordx2 v[{RS+2*tt}:{RS+2*tt+1}], v{T+5}, s[16:19], 0 offen offset:{256*(tt>>1)+32*(tt&1)}")
    a(f"""s_lshl_b32 s40, s42, 12
v_lshl_add_u32 v{VP}, v0, 4, s40
v_lshl_add_u32 v{T+6}, v{T}, 2, v{T+2}
v_bfe_u32 v{T+7}, v{T+6}, 1, 2
v_lshlrev_b32 v{T+8}, 7, v{T+6}
v_lshl_add_u32 v{T+8}, v{T+3}, 3, v{T+8}
v_add_u32 v{T+8}, 16384, v{T+8}
s_lshl_b32 s40, s43, 1""")
    for b in range(2):
        a(f"s_add_u32 s41, s40, {b}\nv_xor_b32 v{T+9}, s41, v{T+7}\nv_lshl_add_u32 v{VWO+b}, v{T+9}, 5, v{T+8}")
    a(f"""v_lshrrev_b32 v{T+7}, 1, v{T+1}
v_lshrrev_b32 v{T+8}, 1, v{T}
v_xor_b32 v{T+7}, v{T+7}, v{T+8}
s_lshl_b32 s40, s43, 2
v_xor_b32 v{T+7}, s40, v{T+7}
v_lshlrev_b32 v{T+7}, 4, v{T+7}
v_lshl_add_u32 v{T+7}, v{T+4}, 7, v{T+7}
v_and_b32 v{T+8}, 1, v{T}
v_lshl_add_u32 v{T+7}, v{T+8}, 3, v{T+7}
v_add_u32 v{VX}, {XS}, v{T+7}
v_xor_b32 v{VX+1}, 32, v{VX}""")
    a(f"""v_lshlrev_b32 v{T+7}, 2, v{T+2}
s_lshl_b32 s40, s42, 3
v_xor_b32 v{T+7}, s40, v{T+7}
v_or_b32 v{T+7}, v{T+7}, v{T+3}
v_lshlrev_b32 v{T+7}, 4, v{T+7}
v_lshl_add_u32 v{T+7}, v{T+6}, 8, v{T+7}
s_lshl_b32 s40, s43, 13
s_add_u32 s40, s40, {YS}
v_add_u32 v{VY}, s40, v{T+7}
v_xor_b32 v{VY+1}, 64, v{VY}
s_mov_b32 s39, 0""")
    for r in range(ACC, ACC + 32): a(f"v_mov_b32 v{r}, 0")
    def rd(kk, buf):
        w = [[f"ds_read_b64_tr_b16 v[{FW[buf]+4*b+2*hf}:{FW[buf]+4*b+2*hf+1}], v{VWO+b} offset:{kk*4096+hf*2048}" for hf in range(2)] for b in range(2)]
        p = [f"ds_read_b128 v[{FP[buf]+4*tt}:{FP[buf]+4*tt+3}], v{VP} offset:{kk*8192+tt*1024}" for tt in range(4)]
        return w[0] + p + w[1]
    def mf(buf):
        return [f"v_mfma_f32_16x16x32_bf16 v[{ACC+16*b+4*tt}:{ACC+16*b+4*tt+3}], v[{FW[buf]+4*b}:{FW[buf]+4*b+3}], v[{FP[buf]+4*tt}:{FP[buf]+4*tt+3}], v[{ACC+16*b+4*tt}:{ACC+16*b+4*tt+3}]" for b in range(2) for tt in range(4)]
    st.mark(mk)
    a("s_barrier")
    st.mark(mk + 1)
    a(rd(0, 0))
    a(f"s_mov_b32 s46, 27\n{name}_cm:")
    a(f"""s_add_u32 s39, s39, 1
s_cmp_eq_u32 s39, 6
s_cselect_b32 s40, {-5*SLOT}, {SLOT}
s_cselect_b32 s39, 0, s39
s_waitcnt lgkmcnt(0)""".replace(str(-5*SLOT), hex((1 << 32) - 5*SLOT)).replace(f", {SLOT}\n", ", s47\n"))
    a(weave(mf(0), rd(1, 1)))
    a(f"v_add_u32 v{VP}, s40, v{VP}\nv_add_u32 v{VWO}, s40, v{VWO}\nv_add_u32 v{VWO+1}, s40, v{VWO+1}")
    a("s_waitcnt lgkmcnt(0)\ns_barrier")
    a(weave(mf(1), rd(0, 0)))
    a(f"s_sub_u32 s46, s46, 1\ns_cmp_lg_u32 s46, 0\ns_cbranch_scc1 {name}_cm")
    a("s_waitcnt lgkmcnt(0)")
    a(weave(mf(0), rd(1, 1)))
    a("s_waitcnt vmcnt(0) lgkmcnt(0)\ns_barrier")
    R = []
    for b in range(2):
        for tt in range(4):
            k = 4 * b + tt
            R.append([f"ds_read_b64 v[{XR+2*k}:{XR+2*k+1}], v{VX+b} offset:{4096*(tt>>1)+512*(tt&1)}",
                      f"ds_read_b64_tr_b16 v[{YR+2*k}:{YR+2*k+1}], v{VY+(tt>>1)} offset:{4096*b+8*(tt&1)}"])
    a(weave(mf(1), R))
    st.mark(mk + 2)
    for tt in range(4): a(f"v_mul_f32_e64 v{RS+2*tt}, -v{RS+2*tt}, v{RS+2*tt+1}")
    for b in range(2):
        for tt in range(4):
            k = 4 * b + tt; c = ACC + 4 * k; t = T + 12 * (k & 1)
            a(f"s_waitcnt lgkmcnt({min(15, 14 - 2*k + k)})")
            for e in range(2):
                a(f"v_lshlrev_b32 v{t+2*e}, 16, v{XR+2*k+e}\nv_and_b32 v{t+2*e+1}, 0xffff0000, v{XR+2*k+e}")
                a(f"v_lshlrev_b32 v{t+4+2*e}, 16, v{YR+2*k+e}\nv_and_b32 v{t+4+2*e+1}, 0xffff0000, v{YR+2*k+e}")
            for j in range(4): a(f"v_fma_f32 v{t+8+j}, v{t+j}, v{RS+2*tt+1}, v{RS+2*tt}")
            for j in range(4): a(f"v_fma_f32 v{t+j}, v{t+8+j}, v{t+4+j}, v{t+j}")
            for j in range(4): a(f"v_add_f32 v{c+j}, v{c+j}, v{t+j}")
            a(f"v_cvt_pk_bf16_f32 v{c}, v{c}, v{c+1}\nv_cvt_pk_bf16_f32 v{c+1}, v{c+2}, v{c+3}")
            a(f"ds_write_b64 v{VX+b}, v[{c}:{c+1}] offset:{4096*(tt>>1)+512*(tt&1)}")
    a("s_waitcnt lgkmcnt(0)")
    a(f"{name}_cfin:")
    a(f"""s_lshr_b32 s40, s3, 2
s_lshl_b32 s41, s40, 13
s_lshl_b32 s40, s40, 17
s_lshl_b32 s42, s38, 10
s_add_u32 s41, s41, s42
s_add_u32 s41, s41, {XS}
v_lshl_add_u32 v3, v0, 4, s41
s_add_u32 s41, s40, 65536""")
    srd(a, 16, 58, 59, 128*2048, add="s44")
    a(f"""s_barrier
ds_read_b128 v[8:11], v3
ds_read_b128 v[12:15], v3 offset:4096
s_waitcnt lgkmcnt(1)
buffer_store_dwordx4 v[8:11], v{VXO}, s[16:19], s40 offen {opt.get('osc', '')}
s_waitcnt lgkmcnt(0)
buffer_store_dwordx4 v[12:15], v{VXO}, s[16:19], s41 offen {opt.get('osc', '')}""")

def kc(opt={}):
    name = opt.get('name', 'kc_kernel')
    a = Asm()
    a(header(name))
    a(f"s_cmp_ge_u32 s2, 256\ns_cbranch_scc1 {name}_end")
    st = Stamps(a, opt.get('marks'), 2, 10, 3)
    st.mark(0)
    a(f"""s_load_dwordx2 s[10:11], s[0:1], {KA['ws']}
v_lshrrev_b32 v1, 6, v0
v_and_b32 v0, 63, v0
v_readfirstlane_b32 s3, v1
s_and_b32 s14, s2, 7
s_lshr_b32 s15, s2, 3
s_mov_b32 s47, {SLOT}""")
    kc_body(a, name, opt, st, 1)
    if opt.get('marks'):
        st.mark(4); a("s_waitcnt vmcnt(0)"); st.mark(5); st.flush(6)
    a(f"{name}_end:\ns_endpgm")
    a(kd(name, vgpr=256, sgpr=100))
    launch = f"; @launch kernel={name} grid=(256,1,1) block=(512,1,1) lds=147456"
    return launch, a.text()
```

```python
from common import *
from conv import conv_helper
LDS_X = 0; LDS_W = 65536; LDS_SC = 131072; LDS_RS = 133120
VA0, VA1 = 2, 3
VW = 4
VZ, VST, VPUB, VPOLL, VSCW, VRS, VCNT, VC2 = 8, 9, 10, 11, 12, 13, 14, 15
ACC_A = 16; ACC_B = 80
FX = (144, 160); FW = (176, 192)
TMP = 208
BSP = 252
C1 = -2.302208198; C2 = -0.1029432397
def fhex(x):
    import struct; return hex(struct.unpack('<I', struct.pack('<f', x))[0])

def reads(ph, slot, kk, buf):
    rx = []
    for tt in range(4):
        off = slot * 4096 + (tt >> 1) * 1024 + (tt & 1) * 512
        va = VA1 if ((tt & 1) ^ kk) else VA0
        r = FX[buf] + 4 * tt
        rx.append(f"ds_read_b128 v[{r}:{r+3}], v{va} offset:{off}")
    rw = []
    for a_ in range(4):
        r = FW[buf] + 4 * a_
        if ph == 'G':
            rw.append([f"ds_read_b128 v[{r}:{r+3}], v{VZ} offset:{kk*32768 + slot*4096 + a_*1024}"])
        else:
            rw.append([f"ds_read_b64_tr_b16 v[{r+2*hf}:{r+2*hf+1}], v{VW+a_} offset:{slot*4096 + kk*2048 + hf*1024}" for hf in range(2)])
    return rw[0] + rx + rw[1] + rw[2] + rw[3]

def mfmas(ph, buf):
    M = []
    acc = ACC_B if ph == 'B' else ACC_A
    for a_ in range(4):
        for tt in range(4):
            c = acc + 4 * (a_ * 4 + tt)
            fx = FX[buf] + 4 * tt; fw = FW[buf] + 4 * a_
            if ph == 'A': M.append(f"v_mfma_f32_16x16x32_bf16 v[{c}:{c+3}], v[{fx}:{fx+3}], v[{fw}:{fw+3}], v[{c}:{c+3}]")
            else:         M.append(f"v_mfma_f32_16x16x32_bf16 v[{c}:{c+3}], v[{fw}:{fw+3}], v[{fx}:{fx+3}], v[{c}:{c+3}]")
    return M

def cost(i):
    if isinstance(i, list): return sum(cost(x) for x in i)
    if i.startswith(("v_exp", "v_rcp", "v_rsq")): return 8
    if i.startswith("s_"): return 1
    return 4

def fill(M, reads_, q, budget, start=0):
    out = []; ri = 0; cr = 0
    for g, m in enumerate(M):
        out.append(m); cr = min(cr + budget, budget + 7)
        if ri < len(reads_): out.append(reads_[ri]); ri += 1; cr -= 4
        while q and g >= start and cost(q[0]) <= cr:
            f = q.pop(0); cr -= cost(f)
            out += f if isinstance(f, list) else [f]
    out += reads_[ri:]
    return out

def stage(ph, slot, nph, q0=None, q1=None, budget=8, pre_bar=(), post_bar=(), head=(), last=False, start0=0):
    S = ["s_waitcnt lgkmcnt(0)"] + list(head)
    S += fill(mfmas(ph, 0), reads(ph, slot, 1, 1), q0 if q0 is not None else [], budget, start0)
    S.append("s_waitcnt lgkmcnt(0)")
    if not last:
        S += list(pre_bar)
        S.append("s_barrier")
        S += list(post_bar)
        S += fill(mfmas(ph, 1), reads(nph, (slot + 1) % 4, 0, 0), q1 if q1 is not None else [], budget)
    else:
        S += mfmas(ph, 1)
    return S

def gelu_plain(regs, tmps):
    L = []; n = len(tmps)
    for g in range(0, len(regs), n):
        z = list(zip(regs[g:g+n], tmps))
        for x, t in z: L.append(f"v_mul_f32 v{t}, v{x}, v{x}")
        for x, t in z: L.append(f"v_fmaak_f32 v{t}, v{VC2}, v{t}, {fhex(C1)}")
        for x, t in z: L.append(f"v_mul_f32 v{t}, v{t}, v{x}")
        for x, t in z: L.append(f"v_exp_f32 v{t}, v{t}")
        for x, t in z: L.append(f"v_add_f32 v{t}, 1.0, v{t}")
        for x, t in z: L.append(f"v_rcp_f32 v{t}, v{t}")
        for x, t in z: L.append(f"v_mul_f32 v{x}, v{x}, v{t}")
    return L

def km(opt={}):
    name = opt.get('name', 'km_kernel')
    X0 = opt.get('X0', 19); X1 = opt.get('X1', 21); Y = opt.get('Y', 26); PZ = opt.get('PZ', 27)
    psc = opt.get('psc', '')
    a = Asm()
    a(header(name))
    a(f"s_cmp_ge_u32 s2, 256\ns_cbranch_scc1 {name}_end")
    st = Stamps(a, opt.get('marks'), 1, 10, 3)
    st.mark(0)
    a(f"""s_load_dwordx4 s[4:7], s[0:1], {KA['win']}
s_load_dwordx2 s[8:9], s[0:1], {KA['bsp']}
s_load_dwordx2 s[10:11], s[0:1], {KA['ws']}
v_lshrrev_b32 v1, 6, v0
v_and_b32 v0, 63, v0
v_readfirstlane_b32 s3, v1
s_and_b32 s14, s2, 7
s_lshr_b32 s15, s2, 3
s_cmp_ge_u32 s15, 28
s_cbranch_scc1 {name}_helper
s_and_b32 s12, s14, 3
s_lshl_b32 s12, s12, 2
s_and_b32 s13, s15, 3
s_add_u32 s12, s12, s13
s_lshr_b32 s13, s14, 2
s_mul_i32 s13, s13, 7
s_lshr_b32 s15, s15, 2
s_add_u32 s13, s13, s15
s_and_b32 s38, s3, 3
s_cmp_lt_u32 s3, 4
s_cbranch_scc1 {name}_cons""")
    VDX, VDW, VDX2, VDZ = 2, 3, 4, 5
    a(f"s_lshl_b32 s36, s38, 14\ns_add_u32 s37, s36, {LDS_W}\ns_mov_b32 s39, 0")
    for m in range(4): a(f"s_mov_b32 s{24+m}, {m*(32*2048-1024)}")
    for n in range(4): a(f"s_mov_b32 s{28+n}, {(32*(n>>1)+4*(n&1))*7168 - n*1024}")
    a(f"""v_lshrrev_b32 v6, 3, v0
v_bfe_u32 v7, v6, 1, 1
v_and_b32 v1, 4, v6
v_or_b32 v7, v7, v1
s_and_b32 s40, s38, 1
s_lshl_b32 s40, s40, 1
s_lshr_b32 s41, s38, 1
s_lshl_b32 s41, s41, 2
s_or_b32 s40, s40, s41
v_xor_b32 v7, s40, v7
v_and_b32 v1, 7, v0
v_xor_b32 v7, v7, v1
v_lshlrev_b32 v7, 4, v7
s_lshl_b32 s41, s38, 3
v_add_u32 v6, s41, v6
v_lshl_add_u32 v{VDX}, v6, 11, v7
v_lshl_add_u32 v{VDX2}, v6, 12, v7""")
    a(f"""v_lshrrev_b32 v6, 4, v0
s_and_b32 s40, s38, 1
s_lshl_b32 s40, s40, 2
v_or_b32 v7, s40, v6
v_bfe_u32 v1, v0, 1, 3
v_xor_b32 v7, v7, v1
v_lshlrev_b32 v7, 5, v7
v_and_b32 v1, 1, v0
v_lshl_or_b32 v7, v1, 4, v7
v_add_u32 v6, s41, v6
v_mul_u32_u24 v6, 7168, v6
v_add_u32 v{VDW}, v6, v7
s_lshl_b32 s40, s38, 12
v_lshl_add_u32 v{VDZ}, v0, 4, s40
s_waitcnt lgkmcnt(0)""")
    def set_xn():
        a(f"s_lshl_b32 s40, s12, 18\ns_add_u32 s40, s40, {hex(WS_XN)}")
        srd(a, 16, 10, 11, 128*2048, add="s40")
    set_xn()
    a("s_lshl_b32 s40, s13, 8\ns_add_u32 s40, s40, 3584")
    srd(a, 20, 4, 5, 64*7168, add="s40")
    def dma(ph):
        vx = VDX2 if ph == 'G' else VDX
        a("s_add_u32 m0, s36, s39\ns_nop 0")
        for m in range(4): a(f"buffer_load_dwordx4 v{vx}, s[16:19], s{24+m} offen offset:{m*1024} lds")
        a("s_add_u32 m0, s37, s39\ns_add_u32 s39, s39, 4096")
        for n in range(4):
            if ph == 'G': a(f"buffer_load_dwordx4 v{VDZ}, s[20:23], 0 offen offset:{n*1024} sc1 lds")
            else: a(f"buffer_load_dwordx4 v{VDW}, s[20:23], s{28+n} offen offset:{n*1024} lds")
        a(f"""s_and_b32 s39, s39, 0x3fff
s_add_u32 s16, s16, 128
s_addc_u32 s17, s17, 0
s_add_u32 s20, s20, {16384 if ph == 'G' else 64*7168}
s_addc_u32 s21, s21, 0""")
    def lloop(ph, cnt, tag):
        a(f"s_mov_b32 s42, {cnt}\n{name}_{tag}:")
        dma(ph)
        a(f"s_waitcnt vmcnt(16)\ns_barrier\ns_sub_u32 s42, s42, 1\ns_cmp_lg_u32 s42, 0\ns_cbranch_scc1 {name}_{tag}")
    for s in range(4): dma('A')
    a("s_waitcnt vmcnt(24)\ns_barrier\ns_waitcnt vmcnt(16)\ns_barrier")
    lloop('A', 12, 'l1')
    set_xn()
    a("s_lshl_b32 s40, s13, 8")
    srd(a, 20, 4, 5, 64*7168, add="s40")
    lloop('B', 3, 'l2')
    dma('B'); a("s_barrier\ns_waitcnt vmcnt(16)\ns_barrier")
    lloop('B', 12, 'l3')
    a("s_lshl_b32 s40, s12, 19")
    srd(a, 16, 6, 7, 128*4096, add="s40")
    for m in range(4): a(f"s_mov_b32 s{24+m}, {m*(32*4096-1024)}")
    a(f"s_lshl_b32 s40, s13, 19\ns_add_u32 s40, s40, {hex(WS_Z2N)}")
    srd(a, 20, 10, 11, 16384, add="s40")
    lloop('G', 32, 'l4')
    a("s_waitcnt vmcnt(8)\ns_barrier\ns_waitcnt vmcnt(0)\ns_barrier")
    a("s_endpgm")
    a(f"{name}_cons:")
    T = TMP
    a(f"""s_lshr_b32 s42, s38, 1
s_and_b32 s43, s38, 1
v_lshrrev_b32 v{T}, 4, v0
v_and_b32 v{T+1}, 15, v0""")
    a(f"""v_lshrrev_b32 v{T+2}, 2, v{T+1}
v_and_b32 v{T+3}, 3, v0
v_lshl_add_u32 v{T+3}, v{T+2}, 3, v{T+3}
s_lshl_b32 s40, s12, 7
s_lshl_b32 s41, s42, 6
s_add_u32 s40, s40, s41
v_add_u32 v{T+3}, s40, v{T+3}
v_lshlrev_b32 v{T+3}, 1, v{T+3}
s_waitcnt lgkmcnt(0)""")
    srd(a, 16, 8, 9, 4096)
    for tt in range(4): a(f"buffer_load_ushort v{BSP+tt}, v{T+3}, s[16:19], 0 offen offset:{64*(tt>>1)+8*(tt&1)}")
    a(f"""v_lshrrev_b32 v{T+3}, 1, v{T+1}
v_xor_b32 v{T+3}, v{T+3}, v{T}
v_lshlrev_b32 v{T+3}, 4, v{T+3}
v_lshl_add_u32 v{T+3}, v{T+2}, 14, v{T+3}
v_and_b32 v{T+4}, 3, v0
v_lshl_add_u32 v{T+3}, v{T+4}, 7, v{T+3}
s_lshl_b32 s40, s42, 11
v_add_u32 v{VA0}, s40, v{T+3}
v_xor_b32 v{VA1}, 64, v{VA0}""")
    a(f"""v_bfe_u32 v{T+3}, v0, 2, 2
v_and_b32 v{T+5}, 1, v{T}
v_lshl_or_b32 v{T+5}, v{T+5}, 2, v{T+3}
v_lshlrev_b32 v{T+6}, 14, v{T}
v_lshl_add_u32 v{T+6}, v{T+3}, 8, v{T+6}
v_lshl_add_u32 v{T+6}, v{T+4}, 3, v{T+6}
v_add_u32 v{T+6}, {LDS_W}, v{T+6}
s_lshl_b32 s44, s43, 2""")
    for a_ in range(4):
        a(f"s_add_u32 s45, s44, {a_}\nv_xor_b32 v{T+7}, s45, v{T+5}\nv_lshl_add_u32 v{VW+a_}, v{T+7}, 5, v{T+6}")
    a(f"""v_lshlrev_b32 v{VST}, 4, v0
s_lshl_b32 s40, s43, 14
s_add_u32 s40, s40, {LDS_W}
v_add_u32 v{VZ}, s40, v{VST}
v_mov_b32 v{VC2}, {fhex(C2)}""")
    a(f"""s_lshl_b32 s40, s12, 4
s_add_u32 s40, s40, s13
s_lshl_b32 s40, s40, 10
s_lshl_b32 s41, s38, 8
s_add_u32 s40, s40, s41
v_add_u32 v{VPUB}, s40, v{VST}
v_mov_b32 v{T+3}, 0x80000000
v_cmp_gt_u32 vcc, 16, v0
v_cndmask_b32 v{VPUB}, v{T+3}, v{VPUB}, vcc
s_lshl_b32 s40, s12, 14
s_lshl_b32 s41, s42, 9
s_add_u32 s40, s40, s41
v_lshl_add_u32 v{VPOLL}, v0, 3, s40""")
    a(f"""s_lshl_b32 s40, s13, 7
s_add_u32 s40, s40, {hex(WS_CNT - WS_PART)}
s_cmp_eq_u32 s38, 0
s_cselect_b32 s40, s40, 0x80000000
s_cselect_b32 s46, 16, 0
v_mov_b32 v{VCNT}, s40
v_cmp_eq_u32 vcc, 0, v0
v_cndmask_b32 v{VCNT}, v{T+3}, v{VCNT}, vcc""")
    a(f"""v_bfe_u32 v{T+3}, v0, 3, 1
v_lshlrev_b32 v{T+3}, 8, v{T+3}
v_lshl_add_u32 v{T+3}, v{T}, 6, v{T+3}
v_bfe_u32 v{T+4}, v0, 2, 1
v_lshl_add_u32 v{T+3}, v{T+4}, 5, v{T+3}
s_lshl_b32 s40, s43, 10
s_lshl_b32 s41, s42, 9
s_add_u32 s40, s40, s41
s_add_u32 s40, s40, {LDS_SC}
v_add_u32 v{VSCW}, s40, v{T+3}
s_lshl_b32 s40, s38, 9
s_add_u32 s40, s40, {LDS_RS}
v_lshl_add_u32 v{VRS}, v{T}, 6, s40
s_mov_b32 s47, s40""")
    srd(a, 20, 10, 11, 0x60000, add=hex(WS_PART))
    a(f"""s_lshl_b32 s40, s13, 5
s_lshl_b32 s41, s12, 1
s_add_u32 s40, s40, s41
s_add_u32 s40, s40, s42
s_lshl_b32 s40, s40, 14
s_lshl_b32 s41, s43, 12
s_add_u32 s40, s40, s41
s_add_u32 s40, s40, {hex(WS_Z2N)}""")
    srd(a, 24, 10, 11, 16384, add="s40")
    a(f"""s_mul_i32 s40, s12, 56
s_lshl_b32 s41, s13, 2
s_add_u32 s40, s40, s41
s_lshl_b32 s41, s43, 1
s_add_u32 s40, s40, s41
s_lshl_b32 s40, s40, 13
s_lshl_b32 s41, s42, 12
s_add_u32 s40, s40, s41
s_add_u32 s40, s40, {hex(WS_P)}""")
    srd(a, 28, 10, 11, 16384, add="s40")
    a("s_mov_b32 s48, 4096\ns_mov_b32 s49, 8192\ns_mov_b32 s50, 12288")
    for r in range(ACC_A, ACC_A + 128): a(f"v_mov_b32 v{r}, 0")
    a("s_waitcnt vmcnt(0)")
    for tt in range(4): a(f"v_lshlrev_b32 v{BSP+tt}, 16, v{BSP+tt}")
    st.mark(1)
    a("s_barrier")
    st.mark(2)
    a(reads('A', 0, 0, 0))
    a(f"s_mov_b32 s51, 4\n{name}_A:")
    for s in range(4): a(stage('A', s, 'A'))
    a(f"s_sub_u32 s51, s51, 1\ns_cmp_lg_u32 s51, 0\ns_cbranch_scc1 {name}_A")
    st.mark(3)
    SUM = T; SQ = T + 16; G = FX[1]; K1_ = FW[1]; K2_ = FW[1] + 2; ONE = FW[1] + 4
    a(f"""v_mov_b32 v{K1_}, {fhex(C1)}
v_mov_b32 v{K1_+1}, {fhex(C1)}
v_mov_b32 v{K2_}, {fhex(C2)}
v_mov_b32 v{K2_+1}, {fhex(C2)}
v_mov_b32 v{ONE}, 1.0
v_mov_b32 v{ONE+1}, 1.0
s_nop 3""")
    pr = lambda r: f"v[{r}:{r+1}]"
    for a_ in range(4):
        xs = [ACC_A + 16 * a_ + 2 * p for p in range(8)]
        ts = [G + 2 * p for p in range(8)]
        z = list(zip(xs, ts))
        for x, t in z: a(f"v_pk_mul_f32 {pr(t)}, {pr(x)}, {pr(x)}")
        for x, t in z: a(f"v_pk_fma_f32 {pr(t)}, {pr(t)}, {pr(K2_)}, {pr(K1_)}")
        for x, t in z: a(f"v_pk_mul_f32 {pr(t)}, {pr(t)}, {pr(x)}")
        for x, t in z: a(f"v_exp_f32 v{t}, v{t}\nv_exp_f32 v{t+1}, v{t+1}")
        for x, t in z: a(f"v_pk_add_f32 {pr(t)}, {pr(t)}, {pr(ONE)}")
        for x, t in z: a(f"v_rcp_f32 v{t}, v{t}\nv_rcp_f32 v{t+1}, v{t+1}")
        for x, t in z: a(f"v_pk_mul_f32 {pr(x)}, {pr(x)}, {pr(t)}")
        for p, x in enumerate(xs):
            if a_ == 0: a(f"v_pk_mul_f32 {pr(SQ+2*p)}, {pr(x)}, {pr(x)}")
            else:       a(f"v_pk_fma_f32 {pr(SQ+2*p)}, {pr(x)}, {pr(x)}, {pr(SQ+2*p)}")
        for p, x in enumerate(xs):
            if a_ == 1:   a(f"v_pk_add_f32 {pr(SUM+2*p)}, {pr(x-16)}, {pr(x)}")
            elif a_ > 1:  a(f"v_pk_add_f32 {pr(SUM+2*p)}, {pr(SUM+2*p)}, {pr(x)}")
    a("s_nop 0")
    for base in (SQ, SUM):
        for k in range(8):
            a(f"v_add_f32_dpp v{base+k}, v{base+k}, v{base+k} row_ror:8 row_mask:0xf bank_mask:0x3")
            a(f"v_add_f32_dpp v{base+k}, v{base+8+k}, v{base+8+k} row_ror:8 row_mask:0xf bank_mask:0xc")
    O = G
    for sidx, base in ((1, SQ), (0, SUM)):
        for j in range(4):
            a(f"v_add_f32_dpp v{O+2*j+sidx}, v{base+j}, v{base+j} row_half_mirror row_mask:0xf bank_mask:0x5")
            a(f"v_add_f32_dpp v{O+2*j+sidx}, v{base+4+j}, v{base+4+j} row_half_mirror row_mask:0xf bank_mask:0xa")
    order = [1, 3, 5, 7, 0, 2, 4, 6]
    for dpp in ("quad_perm:[1,0,3,2]", "quad_perm:[2,3,0,1]"):
        for k in order: a(f"v_add_f32_dpp v{O+k}, v{O+k}, v{O+k} {dpp} row_mask:0xf bank_mask:0xf")
    a(f"""s_mov_b32 exec_lo, 0x11111111
s_mov_b32 exec_hi, 0x11111111
ds_write_b128 v{VSCW}, v[{O}:{O+3}]
ds_write_b128 v{VSCW}, v[{O+4}:{O+7}] offset:16
s_mov_b64 exec, -1
s_lshl_b32 s40, s38, 8
s_add_u32 s40, s40, {LDS_SC}
v_add_u32 v{T+8}, s40, v{VST}
s_waitcnt lgkmcnt(0)
s_barrier""")
    st.mark(4)
    PL = T
    for n in range(16, 32):
        q0 = []; q1 = []; head = []; pre = []; post = []; start = 0
        if n == 16:
            head = [f"ds_read_b128 v[{T}:{T+3}], v{T+8}", f"ds_read_b128 v[{T+4}:{T+7}], v{T+8} offset:1024"]
            q1 = [f"v_add_f32 v{T+k}, v{T+k}, v{T+4+k}" for k in range(4)]
            q1.append(f"buffer_store_dwordx4 v[{T}:{T+3}], v{VPUB}, s[20:23], 0 offen sc1")
        polls = [f"buffer_load_dwordx2 v[{PL+2*jj}:{PL+2*jj+1}], v{VPOLL}, s[20:23], {'0' if jj < 4 else 's%d' % (47 + (jj >> 2))} offen offset:{(jj&3)*1024} sc1" for jj in range(14)]
        if n == X0: q0 = list(polls)
        if n == X1:
            lab = f"{name}_st"
            def sums():
                L = []
                for k in (0, 1): L.append(f"v_add_f32 v{PL+28+k}, v{PL+k}, v{PL+2+k}")
                for k in (0, 1): L.append(f"v_add_f32 v{PL+30+k}, v{PL+4+k}, v{PL+6+k}")
                for jj in range(4, 14):
                    for k in (0, 1): L.append(f"v_add_f32 v{PL+28+2*(jj&1)+k}, v{PL+28+2*(jj&1)+k}, v{PL+2*jj+k}")
                for k in (0, 1): L.append(f"v_add_f32 v{PL+28+k}, v{PL+28+k}, v{PL+30+k}")
                return L
            S_, Q_ = PL + 28, PL + 29
            q0 = ["s_waitcnt vmcnt(0)"] + sums()
            pre = [f"v_cmp_u_f32 vcc, v{S_}, v{Q_}", f"s_cbranch_vccnz {lab}_slow", f"{lab}_ok:"]
            slow = Asm()
            slow(f"{lab}_slow:\ns_mov_b32 s52, 0x100000\n{lab}_again:\ns_mov_b64 s[54:55], 0")
            for k in range(28): slow(f"v_cmp_eq_u32 vcc, -1, v{PL+k}\ns_or_b64 s[54:55], s[54:55], vcc")
            slow(f"s_cmp_eq_u64 s[54:55], 0\ns_cbranch_scc1 {lab}_done\ns_sub_u32 s52, s52, 1\ns_cmp_eq_u32 s52, 0\ns_cbranch_scc1 {lab}_done\ns_sleep 2")
            slow(polls); slow(f"s_waitcnt vmcnt(0)\ns_branch {lab}_again\n{lab}_done:")
            slow(sums()); slow(f"s_branch {lab}_ok")
            q1 = [f"v_mul_f32 v{S_}, {fhex(1/1792)}, v{S_}", f"v_mul_f32 v{Q_}, {fhex(1/1792)}, v{Q_}",
                  f"v_lshl_add_u32 v{PL}, v0, 3, s47",
                  f"v_fma_f32 v{Q_}, -v{S_}, v{S_}, v{Q_}", f"v_max_f32 v{Q_}, 0, v{Q_}", f"v_add_f32 v{Q_}, 0x3727c5ac, v{Q_}",
                  f"v_rsq_f32 v{PL+2}, v{Q_}", "s_nop 0", f"v_mul_f32 v{PL+3}, v{PL+2}, -v{S_}".replace("v_mul_f32", "v_mul_f32_e64"),
                  f"ds_write_b64 v{PL}, v[{PL+2}:{PL+3}]"]
        if n in (X1 + 1, X1 + 2):
            u = n - X1 - 1
            RS = T; OB = T + 16
            head = [f"ds_read_b128 v[{RS+4*k}:{RS+4*k+3}], v{VRS} offset:{u*256+16*k}" for k in range(4)]
            q = []
            for a_ in range(4):
                for h in range(2):
                    c = ACC_A + 4 * (a_ * 4 + 2 * u + h)
                    for j in range(4):
                        q.append(f"v_fma_f32 v{c+j}, v{c+j}, v{RS+8*h+2*j}, v{RS+8*h+2*j+1}")
                c0 = ACC_A + 4 * (a_ * 4 + 2 * u); o = OB + 4 * a_
                for k in range(4): q.append(f"v_cvt_pk_bf16_f32 v{o+k}, v{c0+2*k}, v{c0+2*k+1}")
                q.append(f"buffer_store_dwordx4 v[{o}:{o+3}], v{VST}, s[24:27], {'s49' if u else '0'} offen offset:{a_*1024} sc1")
            q0 = ["s_waitcnt lgkmcnt(4)"] + q
            q1 = q0; start = 3
        if n == Y:
            pre = ["s_waitcnt vmcnt(0)"]
            q1 = [f"v_mov_b32 v{T}, 1", f"buffer_atomic_add v{T}, v{VCNT}, s[20:23], 0 offen sc1"]
        if n == PZ: q1 = q1 + [f"buffer_load_dword v{T+1}, v{VCNT}, s[20:23], 0 offen sc1"]
        if n == 28:
            lab = f"{name}_cz"
            pre = ["s_waitcnt vmcnt(0)", f"v_readfirstlane_b32 s40, v{T+1}", "s_nop 0", "s_cmp_ge_u32 s40, s46", f"s_cbranch_scc0 {lab}_slow", f"{lab}_ok:"]
            slow(f"""{lab}_slow:
s_mov_b32 s52, 0x100000
{lab}_again:
s_sleep 1
buffer_load_dword v{T+1}, v{VCNT}, s[20:23], 0 offen sc1
s_waitcnt vmcnt(0)
v_readfirstlane_b32 s40, v{T+1}
s_sub_u32 s52, s52, 1
s_cmp_eq_u32 s52, 0
s_cbranch_scc1 {lab}_ok
s_cmp_ge_u32 s40, s46
s_cbranch_scc0 {lab}_again
s_branch {lab}_ok""")
        if n in (29, 30):
            hh = n - 29
            q0 = [f"v_mov_b32 v{ACC_A + 4*(a_*4+tt) + j}, v{BSP+tt}" for a_ in (2*hh, 2*hh+1) for tt in range(4) for j in range(4)]
            q1 = q0
        S = stage('B', n % 4, 'G' if n == 31 else 'B', q0, q1, budget=(12 if n in (X1, X1+1, X1+2) else 8), pre_bar=pre, post_bar=post, head=head, start0=start)
        assert not q1 and (q0 is q1 or not q0), (n, q0, q1)
        a(S)
        if n == X1: st.mark(5)
        if n == 28: st.mark(6)
    st.mark(7)
    gq = gelu_plain(list(range(ACC_B, ACC_B + 64)), [T + k for k in range(4)])
    NU = opt.get('NU', 12)
    for n in range(32, 32 + NU):
        a(stage('G', n % 4, 'G', gq, gq, budget=opt.get('gb', 9)))
    assert not gq, len(gq)
    a(f"s_mov_b32 s51, {(28 - NU) // 4}\n{name}_G:")
    for s in range(4): a(stage('G', s, 'G'))
    a(f"s_sub_u32 s51, s51, 1\ns_cmp_lg_u32 s51, 0\ns_cbranch_scc1 {name}_G")
    for s in range(4): a(stage('G', s, 'G', last=(s == 3)))
    st.mark(8)
    for h2 in range(2):
        for tt in range(4):
            o = T + 4 * ((h2 * 4 + tt) % 8)
            cs = [4 * ((2 * h2 + e) * 4 + tt) for e in range(2)]
            if h2 == 1 and tt == 3: a("s_nop 2")
            for c in cs:
                for jp in (0, 2): a(f"v_pk_mul_f32 {pr(ACC_A+c+jp)}, {pr(ACC_A+c+jp)}, {pr(ACC_B+c+jp)}")
            for e, c in enumerate(cs):
                for jp in (0, 2): a(f"v_cvt_pk_bf16_f32 v{o+2*e+jp//2}, v{ACC_A+c+jp}, v{ACC_A+c+jp+1}")
            a(f"buffer_store_dwordx4 v[{o}:{o+3}], v{VST}, s[28:31], {'s49' if h2 else '0'} offen offset:{tt*1024} {psc}")
    if opt.get('marks'):
        a("s_waitcnt vmcnt(0)"); st.mark(9); st.flush(10)
    a("s_endpgm")
    a(slow.L)
    a(f"{name}_helper:")
    if opt.get('noconv'): a("s_endpgm")
    else: conv_helper(a, name, opt, st)
    a(f"{name}_end:\ns_endpgm")
    a(kd(name, vgpr=256, sgpr=100))
    launch = f"; @launch kernel={name} grid=(256,1,1) block=(512,1,1) lds=163840"
    return launch, a.text()
```

```python
from final import *
from k0 import k0
from km import km
from kc import kc
def nop(n='nop_kernel', g=1):
    a = Asm(); a(header(n)); a("s_endpgm"); a(kd(n, vgpr=8, sgpr=16))
    return (f"; @launch kernel={n} grid=({g},1,1) block=(64,1,1) lds=0", a.text())
K = [k0(), km(), kc()]
write(K, "a_base.s")
write(K + [nop()], "b_nop1.s")
write(K + [nop(), nop(), nop(), nop()], "c_nop4.s")
write([nop()] + K, "d_pre.s")
write(K + K, "e_twice.s")
```

```python
import sys
sys.path.insert(0,'bench'); sys.path.insert(0,'gen')
import hx, importlib
from build import assemble
def check(parts, tag='chk'):
    asm = assemble(parts)
    co = hx.build(asm, tag, 14)
    names = []
    for p in parts:
        n = p[0].split('kernel=')[1].split()[0]
        if n not in names: names.append(n)
    print(tag, 'assembled', len(asm), 'bytes; reg check:', hx.cl.address_register_problem(co, list_kernels=names))
```

```python
from common import *
def conv_helper(a, name, opt, st):
    ysc = opt.get('ysc', '')
    ACC = 16
    FT = (48, 112); FH = (80, 144)
    VB7, VT0, VT1, VH, VXO, VD = 2, 3, 4, 5, 6, 7
    VDC = 8
    VDH, VYO, VMH = 12, 13, 14
    MK = 176
    AD = 180
    T = 184
    a(f"""s_load_dwordx4 s[36:39], s[0:1], {KA['ssmk']}
s_lshl_b32 s12, s14, 2
s_add_u32 s12, s12, s15
s_sub_u32 s12, s12, 28
s_lshl_b32 s12, s12, 5
s_add_u32 s12, s12, s3
s_mul_i32 s13, s3, 20480
v_lshrrev_b32 v{T}, 4, v0
v_and_b32 v{T+1}, 15, v0
v_lshlrev_b32 v{VDH}, 4, v0""")
    for c in range(4): a(f"v_xor_b32 v{VDC+c}, {c<<6}, v{VDH}\nv_add_u32 v{VDC+c}, {6-2*c}, v{VDC+c}")
    a(f"""v_lshrrev_b32 v{T+2}, 2, v{T+1}
v_lshlrev_b32 v{T+2}, 3, v{T+2}
v_lshlrev_b32 v{T+3}, 4, v{T}
v_sub_u32 v{T+3}, v{T+3}, v{T+2}
v_add_u32 v{T+4}, 24, v{T+3}
v_and_b32 v{T+2}, 3, v0
v_lshlrev_b32 v{VXO}, 6, v{T+2}
v_lshl_add_u32 v{T+5}, v{T+2}, 12, s13
v_cmp_gt_i32 s[56:57], 40, v{T+3}
v_cmp_gt_i32 s[58:59], 32, v{T+3}""")
    a(f"""v_lshlrev_b32 v{T+6}, 5, v{T+1}
v_lshl_add_u32 v{T+6}, v{T}, 4, v{T+6}
v_add_u32 v{VMH}, -480, v{T+6}
s_add_u32 s16, s13, 16384
v_add_u32 v{T+7}, s16, v{VMH}""")
    a(f"""v_and_b32 v{T+8}, 1, v{T}
v_lshlrev_b32 v{T+8}, 4, v{T+8}
v_lshlrev_b32 v{T+9}, 5, v{T+1}
v_sub_u32 v{T+8}, v{T+8}, v{T+9}
v_add_u32 v{T+8}, 480, v{T+8}
v_xor_b32 v{T+8}, 192, v{T+8}
s_add_u32 s16, s13, 12288
v_add_u32 v{VD}, s16, v{T+8}""")
    a(f"""v_sub_u32 v{T+8}, 15, v{T+1}
v_lshlrev_b32 v{T+9}, 3, v{T}
v_sub_u32 v{T+8}, v{T+8}, v{T+9}
v_mov_b32 v{T+9}, 0xffff
v_mov_b32 v{T+10}, 0xffff0000""")
    for r in range(4):
        a(f"""v_cmp_eq_u32 vcc, {2*r}, v{T+8}
v_cndmask_b32 v{MK+r}, 0, v{T+9}, vcc
v_cmp_eq_u32 vcc, {2*r+1}, v{T+8}
v_cndmask_b32 v{MK+r}, v{MK+r}, v{T+10}, vcc""")
    a(f"""v_and_b32 v{T+8}, 1, v{T}
v_lshlrev_b32 v{T+8}, 9, v{T+8}
v_lshl_add_u32 v{T+8}, v{T+1}, 5, v{T+8}
v_lshrrev_b32 v{T+9}, 1, v{T}
v_lshl_add_u32 v{VYO}, v{T+9}, 4, v{T+8}
s_waitcnt lgkmcnt(0)""")
    srd(a, 20, 10, 11, 1024 * KVR_PITCH, add=hex(WS_KVR))
    srd(a, 24, 36, 37, 4194304)
    srd(a, 28, 10, 11, 4194304, add=hex(WS_YT))
    if opt.get('hpf'):
        a(f"""v_lshrrev_b32 v{T+8}, 5, v0
v_lshlrev_b32 v{T+8}, 15, v{T+8}
v_and_b32 v{T+9}, 31, v0
v_lshl_add_u32 v{T+8}, v{T+9}, 7, v{T+8}
s_lshl_b32 s19, s12, 12""")
    if not opt.get('noprio'): a(f"s_cmp_ge_u32 s3, 4\ns_cbranch_scc1 {name}_np\ns_setprio 1\n{name}_np:")
    a(f"s_mov_b32 s17, 4\n{name}_ch:")
    a(f"""s_mul_i32 s18, s12, {KVR_PITCH}
s_lshl_b32 s19, s12, 12
s_lshr_b32 s32, s12, 1
s_lshl_b32 s32, s32, 2
s_load_dword s33, s[38:39], s32""")
    for c in range(4):
        a(f"s_add_u32 m0, s13, {c*4096}\ns_nop 0")
        for n in range(4): a(f"buffer_load_dwordx4 v{VDC+c}, s[20:23], s18 offen offset:{n*1024} lds")
    a(f"s_add_u32 m0, s13, 16384\ns_nop 0")
    for n in range(4): a(f"buffer_load_dwordx4 v{VDH}, s[24:27], s19 offen offset:{n*1024} {opt.get('hnt', '')} lds")
    if opt.get('hpf'):
        a(f"""s_cmp_eq_u32 s17, 4
s_cbranch_scc0 {name}_nopf
s_add_u32 s32, s19, 32768
buffer_load_dword v1, v{T+8}, s[24:27], s32 offen
s_add_u32 s32, s19, 98304
s_mov_b32 exec_hi, 0
buffer_load_dword v1, v{T+8}, s[24:27], s32 offen
s_mov_b64 exec, -1
{name}_nopf:""")
    a(f"""v_mov_b32 v{VB7}, v{T+4}
v_mov_b32 v{VH}, v{T+7}
v_xad_u32 v{VT0}, v{VB7}, v{VXO}, v{T+5}
v_add_u32 v{VT1}, 8, v{VB7}
v_xad_u32 v{VT1}, v{VT1}, v{VXO}, v{T+5}
s_waitcnt lgkmcnt(0)
s_and_b32 s32, s12, 1
s_lshl_b32 s32, s32, 4
s_lshr_b32 s33, s33, s32
s_pack_ll_b32_b16 s33, s33, s33""")
    for r in range(4): a(f"v_and_b32 v{AD+r}, s33, v{MK+r}")
    if opt.get('hpf'):
        a(f"s_cmp_eq_u32 s17, 4\ns_cbranch_scc1 {name}_w2\ns_waitcnt vmcnt(0)\n{name}_w2:\ns_waitcnt vmcnt(2)")
    else: a("s_waitcnt vmcnt(0)")
    def cmark(base):
        if not opt.get('cmarks'): return
        for c in range(4):
            a(f"s_cmp_eq_u32 s17, {4-c}\ns_cbranch_scc0 {name}_cm{base}_{c}")
            st.mark(1 + 2 * c + base)
            a(f"{name}_cm{base}_{c}:")
    cmark(0)
    def rd(buf):
        R = []
        for x in range(8):
            h = FH[buf] + 4 * x; t = FT[buf] + 4 * x
            R.append(f"ds_read_b128 v[{h}:{h+3}], v{VH} offset:{512*x}")
            R.append(f"ds_read_b64 v[{t}:{t+1}], v{VT0} offset:{512*(7-x)}")
            R.append(f"ds_read_b64 v[{t+2}:{t+3}], v{VT1} offset:{512*(7-x)}")
        return R
    def adv():
        return [f"v_add_u32 v{VB7}, 64, v{VB7}", f"v_add_u32 v{VH}, 64, v{VH}", f"v_xad_u32 v{VT0}, v{VB7}, v{VXO}, v{T+5}",
                f"v_add_u32 v{VT1}, 8, v{VB7}", f"v_xad_u32 v{VT1}, v{VT1}, v{VXO}, v{T+5}"]
    def mf(buf):
        P = [(I, J) for I in range(8) for J in range(I + 1)]
        P.sort(key=lambda p: (p[1] == 0 or p[0] == p[1]))
        return [f"v_mfma_f32_16x16x32_bf16 v[{ACC+4*I}:{ACC+4*I+3}], v[{FT[buf]+4*(I-J)}:{FT[buf]+4*(I-J)+3}], v[{FH[buf]+4*J}:{FH[buf]+4*J+3}], v[{ACC+4*I}:{ACC+4*I+3}]" for I, J in P]
    def maskH(buf, rho):
        L = [f"v_cmp_le_i32 vcc, {-64*rho}, v{VMH}"] if rho else [f"v_cmp_le_i32 vcc, 0, v{VMH}"]
        L += [f"v_cndmask_b32 v{FH[buf]+r}, 0, v{FH[buf]+r}, vcc" for r in range(4)]
        return L
    for I in range(8): a(f"ds_read_b128 v[{FH[1]+4*I}:{FH[1]+4*I+3}], v{VD} offset:{512*(7-I)}")
    a(rd(0)); a(adv())
    a("s_waitcnt lgkmcnt(15)")
    for I in range(8):
        a(f"v_mfma_f32_16x16x32_bf16 v[{ACC+4*I}:{ACC+4*I+3}], v[{AD}:{AD+3}], v[{FH[1]+4*I}:{FH[1]+4*I+3}], 0")
    for rho in range(8):
        b = rho & 1
        a("s_waitcnt lgkmcnt(0)")
        f = maskH(b, rho)
        if rho == 7:
            f += [f"v_cndmask_b32 v{FT[b]+r}, 0, v{FT[b]+r}, s[{56+2*(r>>1)}:{57+2*(r>>1)}]" for r in range(4)]
            a(weave(mf(b), f, per=2))
        else:
            R = rd(1 - b)
            M = mf(b)
            slots = {}
            for g in range(8): slots[g] = [R[g]] + ([f[g]] if g < len(f) else [])
            for g in range(8, 24): slots[g] = [R[g]]
            A_ = adv()
            for g in range(5): slots[25 + g] = [A_[g]]
            a(weave_at(M, slots))
    if not opt.get('keepprio'): a("s_setprio 0")
    cmark(1)
    O = FT[0]
    a("s_nop 7")
    for I in range(0, 8, 2):
        o = O + 2 * I
        for e in range(2):
            c = ACC + 4 * (I + e)
            a(f"v_cvt_pk_bf16_f32 v{o+2*e}, v{c}, v{c+1}\nv_cvt_pk_bf16_f32 v{o+2*e+1}, v{c+2}, v{c+3}")
    for I in range(0, 8, 2):
        o = O + 2 * I
        a(f"v_permlane16_swap_b32 v{o}, v{o+2}\nv_permlane16_swap_b32 v{o+1}, v{o+3}")
    a("s_nop 1")
    for I in range(0, 8, 2):
        o = O + 2 * I
        a(f"buffer_store_dwordx4 v[{o}:{o+3}], v{VYO}, s[28:31], s19 offen offset:{512*I} {ysc}")
    a(f"s_add_u32 s12, s12, 8\ns_sub_u32 s17, s17, 1\ns_cmp_lg_u32 s17, 0\ns_cbranch_scc1 {name}_ch")
    if opt.get('cmarks'):
        a("s_waitcnt vmcnt(0)"); st.mark(9); st.flush(10)
    elif opt.get('marks'):
        st.mark(1); a("s_waitcnt vmcnt(0)"); st.mark(2); st.flush(3)
    a("s_endpgm")
```

```python
from common import *
def wave_allsum(a, regs, tmp):
    for dpp in ("quad_perm:[1,0,3,2]", "quad_perm:[2,3,0,1]", "row_half_mirror", "row_mirror"):
        a("s_nop 1")
        for r in regs: a(f"v_add_f32_dpp v{r}, v{r}, v{r} {dpp} row_mask:0xf bank_mask:0xf")
    for sw in ("v_permlane16_swap_b32", "v_permlane32_swap_b32"):
        for r, t in zip(regs, tmp): a(f"v_mov_b32 v{t}, v{r}")
        a("s_nop 1")
        for r, t in zip(regs, tmp): a(f"{sw} v{t}, v{r}")
        a("s_nop 1")
        for r, t in zip(regs, tmp): a(f"v_add_f32 v{r}, v{r}, v{t}")

def k0(opt={}):
    name = opt.get('name', 'k0_kernel'); sc = opt.get('sc', '')
    a = Asm()
    a(header(name))
    a(f"s_cmp_ge_u32 s2, 256\ns_cbranch_scc1 {name}_end")
    st = Stamps(a, opt.get('marks'), 0, 10, 3)
    st.mark(0)
    a(f"""s_load_dwordx4 s[4:7], s[0:1], {KA['x']}
s_load_dwordx4 s[12:15], s[0:1], {KA['v']}
s_load_dwordx2 s[10:11], s[0:1], {KA['ws']}
s_load_dwordx4 s[56:59], s[0:1], {KA['win']}
s_load_dwordx2 s[44:45], s[0:1], {KA['wout']}
s_load_dwordx2 s[46:47], s[0:1], {KA['ssmk']}
v_lshrrev_b32 v1, 6, v0
v_and_b32 v2, 63, v0
v_readfirstlane_b32 s3, v1
s_lshr_b32 s16, s2, 3
s_and_b32 s17, s2, 7""")
    for n in range(8): a(f"s_mov_b32 s{48+n}, {n*4096}")
    a(f"""s_lshl_b32 s18, s2, 14
s_lshl_b32 s19, s3, 12
s_add_u32 s18, s18, s19
v_lshlrev_b32 v3, 4, v2
v_add_u32 v3, s18, v3""")
    a(f"""s_lshl_b32 s19, s16, 17
s_lshl_b32 s20, s3, 15
s_add_u32 s19, s19, s20
s_sub_u32 s21, s19, 6144
s_cmp_eq_u32 s19, 0
s_cselect_b32 s21, 0x80000000, s21
s_lshl_b32 s20, s17, 8
s_add_u32 s19, s19, s20
s_add_u32 s21, s21, s20
v_lshlrev_b32 v4, 2, v2
v_add_u32 v5, s21, v4
v_add_u32 v4, s19, v4
s_lshl_b32 s20, s17, 10
v_lshlrev_b32 v6, 4, v2
v_add_u32 v6, s20, v6
s_waitcnt lgkmcnt(0)""")
    srd(a, 24, 4, 5, 4194304); srd(a, 28, 6, 7, 4194304); srd(a, 32, 12, 13, 4194304); srd(a, 36, 14, 15, 8192)
    srd(a, 40, 10, 11, 0x1000000)
    X = 16
    K = 32
    V = 52
    SH = 68
    for r in range(2):
        for c in range(2):
            a(f"buffer_load_dwordx4 v[{X+8*r+4*c}:{X+8*r+4*c+3}], v3, s[24:27], 0 offen offset:{r*2048+c*1024}")
    a(f"buffer_load_dwordx4 v[{SH}:{SH+3}], v6, s[36:39], 0 offen")
    nt = opt.get('kvnt', '')
    for r in range(3):
        a(f"buffer_load_dword v{K+r}, v5, s[28:31], s{48+(r>>1)} offen offset:{(r&1)*2048} {nt}")
    for r in range(16):
        a(f"buffer_load_dword v{K+3+r}, v4, s[28:31], s{48+(r>>1)} offen offset:{(r&1)*2048} {nt}")
    for r in range(16):
        a(f"buffer_load_dword v{V+r}, v4, s[32:35], s{48+(r>>1)} offen offset:{(r&1)*2048} {nt}")
    def prefetch(which):
        n = 0
        if not which: return 0
        a(f"s_lshl_b32 s20, s2, 8\nv_add_u32 v152, s20, v0")
        for w in which:
            if w in ('z2', 'win'):
                srd(a, 76, 56, 57, 1024*7168)
                a(f"""v_and_b32 v153, 127, v0
s_lshl_b32 s20, s2, 7
v_add_u32 v153, s20, v153
v_lshrrev_b32 v153, 5, v153
v_mul_u32_u24 v153, 7168, v153
v_and_b32 v154, 31, v0
v_lshl_add_u32 v153, v154, 7, v153
v_cmp_gt_u32 vcc, 28, v154
v_mov_b32 v154, 0x80000000
v_cndmask_b32 v153, v154, v153, vcc
s_cmp_lt_u32 s3, 2
s_mov_b32 s21, {'0' if w == 'win' else '0x7fffffff'}
s_cselect_b32 s20, 3584, s21
buffer_load_dword v155, v153, s[76:79], s20 offen""")
            else:
                lo, sz = {'wsp': (58, 8 << 20), 'wout': (44, 3584 * 1024), 'ssmk': (46, 4 << 20)}[w]
                srd(a, 76, lo, lo + 1, sz)
                a(f"v_lshlrev_b32 v153, 7, v152\nbuffer_load_dword v155, v153, s[76:79], 0 offen")
            n += 1
        return n
    npf = prefetch(opt.get('pf_early', []))
    a(f"""v_mov_b32 v8, -1
v_mov_b32 v9, -1
v_mov_b32 v10, -1
v_mov_b32 v11, -1
v_mov_b32 v12, 0
v_mov_b32 v13, 0
v_mov_b32 v14, 0
v_mov_b32 v15, 0
s_cmp_lg_u32 s3, 0
s_cbranch_scc1 {name}_p1
s_lshl_b32 s20, s2, 10
s_add_u32 s20, s20, {hex(WS_PART)}
v_lshlrev_b32 v7, 4, v2
buffer_store_dwordx4 v[8:11], v7, s[40:43], s20 offen
{name}_p1:
s_lshl_b32 s20, s2, 2
s_add_u32 s20, s20, s3
s_cmp_lg_u32 s20, 1
s_cbranch_scc1 {name}_p2
s_mov_b32 s20, {hex(WS_CNT)}
v_lshlrev_b32 v7, 7, v2
buffer_store_dword v12, v7, s[40:43], s20 offen
{name}_p2:
s_cmp_lg_u32 s16, 0
s_cbranch_scc1 {name}_p3
s_cmp_lt_u32 s3, 2
s_cbranch_scc1 {name}_p3
s_lshl_b32 s20, s17, 7
s_sub_u32 s20, s20, 128
v_add_u32 v7, s20, v0
v_mul_u32_u24 v7, {KVR_PITCH}, v7
s_mov_b32 s20, {hex(WS_KVR + 4096)}
buffer_store_dwordx4 v[12:15], v7, s[40:43], s20 offen
{name}_p3:""")
    st.mark(1)
    a(f"s_waitcnt vmcnt({36+npf})")
    F = 72
    for r in range(2):
        for i in range(8):
            a(f"v_lshlrev_b32 v{F+16*r+2*i}, 16, v{X+8*r+i}\nv_and_b32 v{F+16*r+2*i+1}, 0xffff0000, v{X+8*r+i}")
    S = 104
    for r in range(2):
        a(f"v_pk_add_f32 v[{S+2*r}:{S+2*r+1}], v[{F+16*r}:{F+16*r+1}], v[{F+16*r+2}:{F+16*r+3}]")
    for i in range(2, 8):
        for r in range(2):
            a(f"v_pk_add_f32 v[{S+2*r}:{S+2*r+1}], v[{S+2*r}:{S+2*r+1}], v[{F+16*r+2*i}:{F+16*r+2*i+1}]")
    for r in range(2): a(f"v_add_f32 v{S+2*r}, v{S+2*r}, v{S+2*r+1}")
    wave_allsum(a, [S, S+2], [S+1, S+3])
    for r in range(2): a(f"v_mul_f32 v{S+2*r}, {-1/1024}, v{S+2*r}\nv_mov_b32 v{S+2*r+1}, v{S+2*r}")
    for i in range(8):
        for r in range(2):
            a(f"v_pk_add_f32 v[{F+16*r+2*i}:{F+16*r+2*i+1}], v[{F+16*r+2*i}:{F+16*r+2*i+1}], v[{S+2*r}:{S+2*r+1}]")
    Q = 108
    for r in range(2):
        a(f"v_pk_mul_f32 v[{Q+2*r}:{Q+2*r+1}], v[{F+16*r}:{F+16*r+1}], v[{F+16*r}:{F+16*r+1}]")
    for i in range(1, 8):
        for r in range(2):
            a(f"v_pk_fma_f32 v[{Q+2*r}:{Q+2*r+1}], v[{F+16*r+2*i}:{F+16*r+2*i+1}], v[{F+16*r+2*i}:{F+16*r+2*i+1}], v[{Q+2*r}:{Q+2*r+1}]")
    for r in range(2): a(f"v_add_f32 v{Q+2*r}, v{Q+2*r}, v{Q+2*r+1}")
    wave_allsum(a, [Q, Q+2], [Q+1, Q+3])
    a("v_mov_b32 v7, 0x3727c5ac")
    for r in range(2): a(f"v_fmac_f32 v7, {1/1024}, v{Q+2*r}\nv_rsq_f32 v{Q+2*r}, v7\nv_mov_b32 v7, 0x3727c5ac")
    a("s_nop 0")
    for r in range(2): a(f"v_mov_b32 v{Q+2*r+1}, v{Q+2*r}")
    for i in range(8):
        for r in range(2):
            a(f"v_pk_mul_f32 v[{F+16*r+2*i}:{F+16*r+2*i+1}], v[{F+16*r+2*i}:{F+16*r+2*i+1}], v[{Q+2*r}:{Q+2*r+1}]")
    for r in range(2):
        for i in range(8):
            a(f"v_cvt_pk_bf16_f32 v{X+8*r+i}, v{F+16*r+2*i}, v{F+16*r+2*i+1}")
    for r in range(2):
        for c in range(2):
            a(f"buffer_store_dwordx4 v[{X+8*r+4*c}:{X+8*r+4*c+3}], v3, s[40:43], 0 offen offset:{r*2048+c*1024} {sc}")
    a(f"""v_sub_f32 v8, 0, v{S}
v_mov_b32 v9, v{Q}
v_sub_f32 v10, 0, v{S+2}
v_mov_b32 v11, v{Q+2}
s_lshr_b32 s20, s18, 8
s_add_u32 s20, s20, {hex(WS_ST1)}
v_mov_b32 v7, 0
s_mov_b64 exec, 1
buffer_store_dwordx4 v[8:11], v7, s[40:43], s20 offen {sc}
s_mov_b64 exec, -1""")
    st.mark(2)
    a(f"s_waitcnt vmcnt({21+npf})")
    KF = 72
    SF = 112
    a(f"""v_lshlrev_b32 v{SF}, 16, v{SH}
v_and_b32 v{SF+2}, 0xffff0000, v{SH}
v_lshlrev_b32 v{SF+4}, 16, v{SH+1}
v_and_b32 v{SF+6}, 0xffff0000, v{SH+1}
v_lshlrev_b32 v{SF+1}, 16, v{SH+2}
v_and_b32 v{SF+3}, 0xffff0000, v{SH+2}
v_lshlrev_b32 v{SF+5}, 16, v{SH+3}
v_and_b32 v{SF+7}, 0xffff0000, v{SH+3}""")
    for r in range(19):
        a(f"v_lshlrev_b32 v{KF+2*r}, 16, v{K+r}\nv_and_b32 v{KF+2*r+1}, 0xffff0000, v{K+r}")
    R = 120
    for j in range(4):
        for r in range(16):
            kk = KF + 2 * (r + 3 - j)
            if j == 0: a(f"v_pk_mul_f32 v[{R+2*r}:{R+2*r+1}], v[{kk}:{kk+1}], v[{SF}:{SF+1}]")
            else:      a(f"v_pk_fma_f32 v[{R+2*r}:{R+2*r+1}], v[{kk}:{kk+1}], v[{SF+2*j}:{SF+2*j+1}], v[{R+2*r}:{R+2*r+1}]")
    a(f"s_waitcnt vmcnt({5+npf})")
    for r in range(16):
        a(f"v_lshlrev_b32 v{KF+2*r}, 16, v{V+r}\nv_and_b32 v{KF+2*r+1}, 0xffff0000, v{V+r}")
    for r in range(16):
        a(f"v_pk_mul_f32 v[{R+2*r}:{R+2*r+1}], v[{R+2*r}:{R+2*r+1}], v[{KF+2*r}:{KF+2*r+1}]")
    O = 32
    for c in range(2):
        for i in range(8):
            a(f"v_cvt_pk_bf16_f32 v{O+8*c+i}, v{R+2*(15-2*i)+c}, v{R+2*(14-2*i)+c}")
    a(f"""s_sub_u32 s20, 3, s3
s_lshl_b32 s20, s20, 1
v_and_b32 v7, 7, v2
v_xor_b32 v7, s20, v7
v_lshlrev_b32 v7, 4, v7
v_lshl_add_u32 v7, v2, 8, v7
v_xor_b32 v8, 16, v7
ds_write_b128 v7, v[{O}:{O+3}]
ds_write_b128 v8, v[{O+4}:{O+7}]
ds_write_b128 v7, v[{O+8}:{O+11}] offset:128
ds_write_b128 v8, v[{O+12}:{O+15}] offset:128
v_lshlrev_b32 v7, 4, v0
v_lshrrev_b32 v8, 3, v0
v_lshrrev_b32 v9, 4, v0
v_xor_b32 v9, v9, v0
v_and_b32 v9, 7, v9
v_lshlrev_b32 v9, 4, v9
v_mul_u32_u24 v8, {KVR_PITCH}, v8
v_add_u32 v8, v8, v9
s_mul_i32 s20, s17, {128*KVR_PITCH}
s_lshl_b32 s21, s16, 7
s_sub_u32 s20, s20, s21
s_add_u32 s20, s20, {hex(WS_KVR + 3968)}
s_waitcnt lgkmcnt(0)
s_barrier""")
    for n in range(4): a(f"ds_read_b128 v[{O+4*n}:{O+4*n+3}], v7 offset:{n*4096}")
    for n in range(4):
        a(f"s_waitcnt lgkmcnt({3-n})")
        a(f"buffer_store_dwordx4 v[{O+4*n}:{O+4*n+3}], v8, s[40:43], s20 offen {sc}")
        if n < 3: a(f"s_add_u32 s20, s20, {32*KVR_PITCH}")
    st.mark(3)
    if opt.get('marks'):
        a("s_waitcnt vmcnt(0)"); st.mark(4); st.flush(5); a("s_mov_b64 exec, -1")
    prefetch(opt.get('pf_late', []))
    a(f"{name}_end:\ns_endpgm")
    a(kd(name, vgpr=156))
    launch = f"; @launch kernel={name} grid=(256,1,1) block=(256,1,1) lds=16384"
    return launch, a.text()
```

```python
from common import *
from conv import conv_helper
LDS_X = 0; LDS_W = 65536; LDS_SC = 131072; LDS_RS = 133120
VA0, VA1 = 2, 3
VW = 4
VZ, VST, VPUB, VPOLL, VSCW, VRS, VCNT, VC2 = 8, 9, 10, 11, 12, 13, 14, 15
ACC_A = 16; ACC_B = 80
FX = (144, 160); FW = (176, 192)
TMP = 208
BSP = 252
C1 = -2.302208198; C2 = -0.1029432397
def fhex(x):
    import struct; return hex(struct.unpack('<I', struct.pack('<f', x))[0])

def reads(ph, slot, kk, buf):
    rx = []
    for tt in range(4):
        off = slot * 4096 + (tt >> 1) * 1024 + (tt & 1) * 512
        va = VA1 if ((tt & 1) ^ kk) else VA0
        r = FX[buf] + 4 * tt
        rx.append(f"ds_read_b128 v[{r}:{r+3}], v{va} offset:{off}")
    rw = []
    for a_ in range(4):
        r = FW[buf] + 4 * a_
        if ph == 'G':
            rw.append([f"ds_read_b128 v[{r}:{r+3}], v{VZ} offset:{kk*32768 + slot*4096 + a_*1024}"])
        else:
            rw.append([f"ds_read_b64_tr_b16 v[{r+2*hf}:{r+2*hf+1}], v{VW+a_} offset:{slot*4096 + kk*2048 + hf*1024}" for hf in range(2)])
    return rw[0] + rx + rw[1] + rw[2] + rw[3]

def mfmas(ph, buf):
    M = []
    acc = ACC_B if ph == 'B' else ACC_A
    for a_ in range(4):
        for tt in range(4):
            c = acc + 4 * (a_ * 4 + tt)
            fx = FX[buf] + 4 * tt; fw = FW[buf] + 4 * a_
            if ph == 'A': M.append(f"v_mfma_f32_16x16x32_bf16 v[{c}:{c+3}], v[{fx}:{fx+3}], v[{fw}:{fw+3}], v[{c}:{c+3}]")
            else:         M.append(f"v_mfma_f32_16x16x32_bf16 v[{c}:{c+3}], v[{fw}:{fw+3}], v[{fx}:{fx+3}], v[{c}:{c+3}]")
    return M

def cost(i):
    if isinstance(i, list): return sum(cost(x) for x in i)
    if i.startswith(("v_exp", "v_rcp", "v_rsq")): return 8
    if i.startswith("s_"): return 1
    return 4

def fill(M, reads_, q, budget, start=0):
    out = []; ri = 0; cr = 0
    for g, m in enumerate(M):
        out.append(m); cr = min(cr + budget, budget + 7)
        if ri < len(reads_): out.append(reads_[ri]); ri += 1; cr -= 4
        while q and g >= start and cost(q[0]) <= cr:
            f = q.pop(0); cr -= cost(f)
            out += f if isinstance(f, list) else [f]
    out += reads_[ri:]
    return out

def stage(ph, slot, nph, q0=None, q1=None, budget=8, pre_bar=(), post_bar=(), head=(), last=False, start0=0):
    S = ["s_waitcnt lgkmcnt(0)"] + list(head)
    S += fill(mfmas(ph, 0), reads(ph, slot, 1, 1), q0 if q0 is not None else [], budget, start0)
    S.append("s_waitcnt lgkmcnt(0)")
    if not last:
        S += list(pre_bar)
        S.append("s_barrier")
        S += list(post_bar)
        S += fill(mfmas(ph, 1), reads(nph, (slot + 1) % 4, 0, 0), q1 if q1 is not None else [], budget)
    else:
        S += mfmas(ph, 1)
    return S

def gelu_plain(regs, tmps):
    L = []; n = len(tmps)
    for g in range(0, len(regs), n):
        z = list(zip(regs[g:g+n], tmps))
        for x, t in z: L.append(f"v_mul_f32 v{t}, v{x}, v{x}")
        for x, t in z: L.append(f"v_fmaak_f32 v{t}, v{VC2}, v{t}, {fhex(C1)}")
        for x, t in z: L.append(f"v_mul_f32 v{t}, v{t}, v{x}")
        for x, t in z: L.append(f"v_exp_f32 v{t}, v{t}")
        for x, t in z: L.append(f"v_add_f32 v{t}, 1.0, v{t}")
        for x, t in z: L.append(f"v_rcp_f32 v{t}, v{t}")
        for x, t in z: L.append(f"v_mul_f32 v{x}, v{x}, v{t}")
    return L

def km(opt={}):
    name = opt.get('name', 'km_kernel')
    X0 = opt.get('X0', 19); X1 = opt.get('X1', 21); Y = opt.get('Y', 26); PZ = opt.get('PZ', 27)
    psc = opt.get('psc', '')
    a = Asm()
    a(header(name))
    a(f"s_cmp_ge_u32 s2, 256\ns_cbranch_scc1 {name}_end")
    st = Stamps(a, opt.get('marks'), 1, 10, 3)
    st.mark(0)
    a(f"""s_load_dwordx4 s[4:7], s[0:1], {KA['win']}
s_load_dwordx2 s[8:9], s[0:1], {KA['bsp']}
s_load_dwordx2 s[10:11], s[0:1], {KA['ws']}
v_lshrrev_b32 v1, 6, v0
v_and_b32 v0, 63, v0
v_readfirstlane_b32 s3, v1
s_and_b32 s14, s2, 7
s_lshr_b32 s15, s2, 3
s_cmp_ge_u32 s15, 28
s_cbranch_scc1 {name}_helper
s_and_b32 s12, s14, 3
s_lshl_b32 s12, s12, 2
s_and_b32 s13, s15, 3
s_add_u32 s12, s12, s13
s_lshr_b32 s13, s14, 2
s_mul_i32 s13, s13, 7
s_lshr_b32 s15, s15, 2
s_add_u32 s13, s13, s15
s_and_b32 s38, s3, 3
s_cmp_lt_u32 s3, 4
s_cbranch_scc1 {name}_cons""")
    VDX, VDW, VDX2, VDZ = 2, 3, 4, 5
    a(f"s_lshl_b32 s36, s38, 14\ns_add_u32 s37, s36, {LDS_W}\ns_mov_b32 s39, 0")
    for m in range(4): a(f"s_mov_b32 s{24+m}, {m*(32*2048-1024)}")
    for n in range(4): a(f"s_mov_b32 s{28+n}, {(32*(n>>1)+4*(n&1))*7168 - n*1024}")
    a(f"""v_lshrrev_b32 v6, 3, v0
v_bfe_u32 v7, v6, 1, 1
v_and_b32 v1, 4, v6
v_or_b32 v7, v7, v1
s_and_b32 s40, s38, 1
s_lshl_b32 s40, s40, 1
s_lshr_b32 s41, s38, 1
s_lshl_b32 s41, s41, 2
s_or_b32 s40, s40, s41
v_xor_b32 v7, s40, v7
v_and_b32 v1, 7, v0
v_xor_b32 v7, v7, v1
v_lshlrev_b32 v7, 4, v7
s_lshl_b32 s41, s38, 3
v_add_u32 v6, s41, v6
v_lshl_add_u32 v{VDX}, v6, 11, v7
v_lshl_add_u32 v{VDX2}, v6, 12, v7""")
    a(f"""v_lshrrev_b32 v6, 4, v0
s_and_b32 s40, s38, 1
s_lshl_b32 s40, s40, 2
v_or_b32 v7, s40, v6
v_bfe_u32 v1, v0, 1, 3
v_xor_b32 v7, v7, v1
v_lshlrev_b32 v7, 5, v7
v_and_b32 v1, 1, v0
v_lshl_or_b32 v7, v1, 4, v7
v_add_u32 v6, s41, v6
v_mul_u32_u24 v6, 7168, v6
v_add_u32 v{VDW}, v6, v7
s_lshl_b32 s40, s38, 12
v_lshl_add_u32 v{VDZ}, v0, 4, s40
s_waitcnt lgkmcnt(0)""")
    def set_xn():
        a(f"s_lshl_b32 s40, s12, 18\ns_add_u32 s40, s40, {hex(WS_XN)}")
        srd(a, 16, 10, 11, 128*2048, add="s40")
    set_xn()
    a("s_lshl_b32 s40, s13, 8\ns_add_u32 s40, s40, 3584")
    srd(a, 20, 4, 5, 64*7168, add="s40")
    def dma(ph):
        vx = VDX2 if ph == 'G' else VDX
        a("s_add_u32 m0, s36, s39\ns_nop 0")
        for m in range(4): a(f"buffer_load_dwordx4 v{vx}, s[16:19], s{24+m} offen offset:{m*1024} lds")
        a("s_add_u32 m0, s37, s39\ns_add_u32 s39, s39, 4096")
        for n in range(4):
            if ph == 'G': a(f"buffer_load_dwordx4 v{VDZ}, s[20:23], 0 offen offset:{n*1024} sc1 lds")
            else: a(f"buffer_load_dwordx4 v{VDW}, s[20:23], s{28+n} offen offset:{n*1024} lds")
        a(f"""s_and_b32 s39, s39, 0x3fff
s_add_u32 s16, s16, 128
s_addc_u32 s17, s17, 0
s_add_u32 s20, s20, {16384 if ph == 'G' else 64*7168}
s_addc_u32 s21, s21, 0""")
    def lloop(ph, cnt, tag):
        a(f"s_mov_b32 s42, {cnt}\n{name}_{tag}:")
        dma(ph)
        a(f"s_waitcnt vmcnt(16)\ns_barrier\ns_sub_u32 s42, s42, 1\ns_cmp_lg_u32 s42, 0\ns_cbranch_scc1 {name}_{tag}")
    for s in range(4): dma('A')
    a("s_waitcnt vmcnt(24)\ns_barrier\ns_waitcnt vmcnt(16)\ns_barrier")
    lloop('A', 12, 'l1')
    set_xn()
    a("s_lshl_b32 s40, s13, 8")
    srd(a, 20, 4, 5, 64*7168, add="s40")
    lloop('B', 3, 'l2')
    dma('B'); a("s_barrier\ns_waitcnt vmcnt(16)\ns_barrier")
    lloop('B', 12, 'l3')
    a("s_lshl_b32 s40, s12, 19")
    srd(a, 16, 6, 7, 128*4096, add="s40")
    for m in range(4): a(f"s_mov_b32 s{24+m}, {m*(32*4096-1024)}")
    a(f"s_lshl_b32 s40, s13, 19\ns_add_u32 s40, s40, {hex(WS_Z2N)}")
    srd(a, 20, 10, 11, 16384, add="s40")
    lloop('G', 32, 'l4')
    a("s_waitcnt vmcnt(8)\ns_barrier\ns_waitcnt vmcnt(0)\ns_barrier")
    a("s_endpgm")
    a(f"{name}_cons:")
    T = TMP
    a(f"""s_lshr_b32 s42, s38, 1
s_and_b32 s43, s38, 1
v_lshrrev_b32 v{T}, 4, v0
v_and_b32 v{T+1}, 15, v0""")
    a(f"""v_lshrrev_b32 v{T+2}, 2, v{T+1}
v_and_b32 v{T+3}, 3, v0
v_lshl_add_u32 v{T+3}, v{T+2}, 3, v{T+3}
s_lshl_b32 s40, s12, 7
s_lshl_b32 s41, s42, 6
s_add_u32 s40, s40, s41
v_add_u32 v{T+3}, s40, v{T+3}
v_lshlrev_b32 v{T+3}, 1, v{T+3}
s_waitcnt lgkmcnt(0)""")
    srd(a, 16, 8, 9, 4096)
    for tt in range(4): a(f"buffer_load_ushort v{BSP+tt}, v{T+3}, s[16:19], 0 offen offset:{64*(tt>>1)+8*(tt&1)}")
    a(f"""v_lshrrev_b32 v{T+3}, 1, v{T+1}
v_xor_b32 v{T+3}, v{T+3}, v{T}
v_lshlrev_b32 v{T+3}, 4, v{T+3}
v_lshl_add_u32 v{T+3}, v{T+2}, 14, v{T+3}
v_and_b32 v{T+4}, 3, v0
v_lshl_add_u32 v{T+3}, v{T+4}, 7, v{T+3}
s_lshl_b32 s40, s42, 11
v_add_u32 v{VA0}, s40, v{T+3}
v_xor_b32 v{VA1}, 64, v{VA0}""")
    a(f"""v_bfe_u32 v{T+3}, v0, 2, 2
v_and_b32 v{T+5}, 1, v{T}
v_lshl_or_b32 v{T+5}, v{T+5}, 2, v{T+3}
v_lshlrev_b32 v{T+6}, 14, v{T}
v_lshl_add_u32 v{T+6}, v{T+3}, 8, v{T+6}
v_lshl_add_u32 v{T+6}, v{T+4}, 3, v{T+6}
v_add_u32 v{T+6}, {LDS_W}, v{T+6}
s_lshl_b32 s44, s43, 2""")
    for a_ in range(4):
        a(f"s_add_u32 s45, s44, {a_}\nv_xor_b32 v{T+7}, s45, v{T+5}\nv_lshl_add_u32 v{VW+a_}, v{T+7}, 5, v{T+6}")
    a(f"""v_lshlrev_b32 v{VST}, 4, v0
s_lshl_b32 s40, s43, 14
s_add_u32 s40, s40, {LDS_W}
v_add_u32 v{VZ}, s40, v{VST}
v_mov_b32 v{VC2}, {fhex(C2)}""")
    a(f"""s_lshl_b32 s40, s12, 4
s_add_u32 s40, s40, s13
s_lshl_b32 s40, s40, 10
s_lshl_b32 s41, s38, 8
s_add_u32 s40, s40, s41
v_add_u32 v{VPUB}, s40, v{VST}
v_mov_b32 v{T+3}, 0x80000000
v_cmp_gt_u32 vcc, 16, v0
v_cndmask_b32 v{VPUB}, v{T+3}, v{VPUB}, vcc
s_lshl_b32 s40, s12, 14
s_lshl_b32 s41, s42, 9
s_add_u32 s40, s40, s41
v_lshl_add_u32 v{VPOLL}, v0, 3, s40""")
    a(f"""s_lshl_b32 s40, s13, 7
s_add_u32 s40, s40, {hex(WS_CNT - WS_PART)}
s_cmp_eq_u32 s38, 0
s_cselect_b32 s40, s40, 0x80000000
s_cselect_b32 s46, 16, 0
v_mov_b32 v{VCNT}, s40
v_cmp_eq_u32 vcc, 0, v0
v_cndmask_b32 v{VCNT}, v{T+3}, v{VCNT}, vcc""")
    a(f"""v_bfe_u32 v{T+3}, v0, 3, 1
v_lshlrev_b32 v{T+3}, 8, v{T+3}
v_lshl_add_u32 v{T+3}, v{T}, 6, v{T+3}
v_bfe_u32 v{T+4}, v0, 2, 1
v_lshl_add_u32 v{T+3}, v{T+4}, 5, v{T+3}
s_lshl_b32 s40, s43, 10
s_lshl_b32 s41, s42, 9
s_add_u32 s40, s40, s41
s_add_u32 s40, s40, {LDS_SC}
v_add_u32 v{VSCW}, s40, v{T+3}
s_lshl_b32 s40, s38, 9
s_add_u32 s40, s40, {LDS_RS}
v_lshl_add_u32 v{VRS}, v{T}, 6, s40
s_mov_b32 s47, s40""")
    srd(a, 20, 10, 11, 0x60000, add=hex(WS_PART))
    a(f"""s_lshl_b32 s40, s13, 5
s_lshl_b32 s41, s12, 1
s_add_u32 s40, s40, s41
s_add_u32 s40, s40, s42
s_lshl_b32 s40, s40, 14
s_lshl_b32 s41, s43, 12
s_add_u32 s40, s40, s41
s_add_u32 s40, s40, {hex(WS_Z2N)}""")
    srd(a, 24, 10, 11, 16384, add="s40")
    a(f"""s_mul_i32 s40, s12, 56
s_lshl_b32 s41, s13, 2
s_add_u32 s40, s40, s41
s_lshl_b32 s41, s43, 1
s_add_u32 s40, s40, s41
s_lshl_b32 s40, s40, 13
s_lshl_b32 s41, s42, 12
s_add_u32 s40, s40, s41
s_add_u32 s40, s40, {hex(WS_P)}""")
    srd(a, 28, 10, 11, 16384, add="s40")
    a("s_mov_b32 s48, 4096\ns_mov_b32 s49, 8192\ns_mov_b32 s50, 12288")
    def prefetch(which):
        n = 0
        for w in which:
            if w == 'z1':
                srd(a, 32, 4, 5, 1024*7168)
                a(f"""s_lshl_b32 s40, s38, 5
s_lshl_b32 s41, s12, 6
s_add_u32 s40, s40, s41
v_lshrrev_b32 v{T+3}, 1, v0
v_add_u32 v{T+3}, s40, v{T+3}
v_mul_u32_u24 v{T+3}, 7168, v{T+3}
v_and_b32 v{T+4}, 1, v0
v_lshl_add_u32 v{T+3}, v{T+4}, 7, v{T+3}
s_lshl_b32 s40, s13, 8
s_cmp_lt_u32 s38, 2
s_cselect_b32 s40, s40, 0x7fffffff
buffer_load_dword v1, v{T+3}, s[32:35], s40 offen"""); n += 1
            if w == 'wsp':
                a("s_lshl_b32 s40, s12, 19")
                srd(a, 32, 6, 7, 128*4096, add="s40")
                a(f"""s_lshl_b32 s40, s13, 15
s_lshl_b32 s41, s38, 13
s_add_u32 s40, s40, s41
v_lshlrev_b32 v{T+3}, 7, v0
buffer_load_dword v1, v{T+3}, s[32:35], s40 offen
s_lshl_b32 s40, s13, 13
s_add_u32 s40, s40, {3584*128}
s_cmp_eq_u32 s38, 3
s_cselect_b32 s40, s40, 0x7fffffff
buffer_load_dword v1, v{T+3}, s[32:35], s40 offen"""); n += 2
            if w == 'wout':
                a(f"s_load_dwordx2 s[52:53], s[0:1], {KA['wout']}\ns_waitcnt lgkmcnt(0)")
                srd(a, 32, 52, 53, 3584*1024)
                a(f"""s_lshl_b32 s40, s2, 14
s_and_b32 s41, s38, 1
s_lshl_b32 s41, s41, 13
s_add_u32 s40, s40, s41
s_cmp_ge_u32 s38, 2
s_cselect_b32 s40, s40, 0x7fffffff
v_lshlrev_b32 v{T+3}, 7, v0
buffer_load_dword v1, v{T+3}, s[32:35], s40 offen"""); n += 1
        return n
    npf = prefetch(opt.get('pf0', []))
    TR = opt.get('trickle')
    VP1, VP2 = T + 42, T + 43
    ool = Asm()
    if TR:
        z0, w0, w1, w2, o0 = TR
        a(f"""s_load_dwordx2 s[52:53], s[0:1], {KA['wout']}
s_cmp_lt_u32 s38, 2
s_cbranch_scc1 {name}_tz
s_lshl_b32 s40, s12, 19""")
        srd(a, 32, 6, 7, 128*4096, add="s40")
        a(f"""s_mov_b64 s[56:57], s[32:33]
s_mov_b32 s58, {128*4096}
s_mov_b32 s59, 0x20000
s_and_b32 s40, s38, 1
s_lshl_b32 s40, s40, 18
v_lshl_add_u32 v{VP1}, v0, 12, s40
v_mov_b32 v{VP2}, v{VP1}
s_lshl_b32 s39, s13, 7
s_add_u32 s44, s39, {14*128}
s_mov_b64 s[36:37], 0
s_add_u32 s40, s13, {w0}
s_bitset1_b64 s[36:37], s40
s_add_u32 s40, s13, {w1}
s_bitset1_b64 s[36:37], s40
s_cmp_lt_u32 s13, 4
s_cbranch_scc0 {name}_td
s_add_u32 s40, s13, {w2}
s_bitset1_b64 s[36:37], s40
s_branch {name}_td
{name}_tz:""")
        srd(a, 32, 4, 5, 1024*7168)
        a(f"""s_lshl_b32 s40, s38, 5
s_lshl_b32 s41, s12, 6
s_add_u32 s40, s40, s41
v_lshrrev_b32 v{VP1}, 1, v0
v_add_u32 v{VP1}, s40, v{VP1}
v_mul_u32_u24 v{VP1}, 7168, v{VP1}
v_and_b32 v{VP2}, 1, v0
v_lshl_add_u32 v{VP1}, v{VP2}, 7, v{VP1}
v_lshlrev_b32 v{VP2}, 7, v0
s_lshl_b32 s39, s13, 8
s_lshl_b32 s44, s2, 14
s_lshl_b32 s41, s38, 13
s_add_u32 s44, s44, s41
s_mov_b64 s[36:37], 0
s_add_i32 s40, s12, {z0}
s_max_i32 s40, s40, 0
s_bitset1_b64 s[36:37], s40
s_lshr_b32 s40, s2, 3
s_and_b32 s40, s40, 15
s_add_u32 s40, s40, {o0}
s_bitset1_b64 s[36:37], s40
s_waitcnt lgkmcnt(0)""")
        srd(a, 56, 52, 53, 3584*1024)
        a(f"{name}_td:")
    cnt = [0]
    def trick(reg, bit, region):
        if not TR: return []
        k = cnt[0]; cnt[0] += 1
        if region == 1: ool(f"{name}_pf{k}:\nbuffer_load_dword v1, v{VP1}, s[32:35], s39 offen\ns_branch {name}_pb{k}")
        else: ool(f"{name}_pf{k}:\nbuffer_load_dword v1, v{VP2}, s[56:59], s44 offen\ns_add_u32 s44, s44, {14*128}\ns_branch {name}_pb{k}")
        return [f"s_bitcmp1_b32 s{reg}, {bit}", f"s_cbranch_scc1 {name}_pf{k}", f"{name}_pb{k}:"]
    for r in range(ACC_A, ACC_A + 128): a(f"v_mov_b32 v{r}, 0")
    a(f"s_waitcnt vmcnt({npf})")
    for tt in range(4): a(f"v_lshlrev_b32 v{BSP+tt}, 16, v{BSP+tt}")
    st.mark(1)
    a("s_barrier")
    st.mark(2)
    prefetch(opt.get('pf1', []))
    a(reads('A', 0, 0, 0))
    a(f"s_mov_b32 s51, 4\n{name}_A:")
    for s in range(4): a(stage('A', s, 'A', post_bar=trick(36, s, 1)))
    if TR: a("s_lshr_b32 s36, s36, 4")
    a(f"s_sub_u32 s51, s51, 1\ns_cmp_lg_u32 s51, 0\ns_cbranch_scc1 {name}_A")
    st.mark(3)
    prefetch(opt.get('pf2', []))
    SUM = T; SQ = T + 16; G = FX[1]; K1_ = FW[1]; K2_ = FW[1] + 2; ONE = FW[1] + 4
    a(f"""v_mov_b32 v{K1_}, {fhex(C1)}
v_mov_b32 v{K1_+1}, {fhex(C1)}
v_mov_b32 v{K2_}, {fhex(C2)}
v_mov_b32 v{K2_+1}, {fhex(C2)}
v_mov_b32 v{ONE}, 1.0
v_mov_b32 v{ONE+1}, 1.0
s_nop 3""")
    pr = lambda r: f"v[{r}:{r+1}]"
    for a_ in range(4):
        xs = [ACC_A + 16 * a_ + 2 * p for p in range(8)]
        ts = [G + 2 * p for p in range(8)]
        z = list(zip(xs, ts))
        for x, t in z: a(f"v_pk_mul_f32 {pr(t)}, {pr(x)}, {pr(x)}")
        for x, t in z: a(f"v_pk_fma_f32 {pr(t)}, {pr(t)}, {pr(K2_)}, {pr(K1_)}")
        for x, t in z: a(f"v_pk_mul_f32 {pr(t)}, {pr(t)}, {pr(x)}")
        for x, t in z: a(f"v_exp_f32 v{t}, v{t}\nv_exp_f32 v{t+1}, v{t+1}")
        for x, t in z: a(f"v_pk_add_f32 {pr(t)}, {pr(t)}, {pr(ONE)}")
        for x, t in z: a(f"v_rcp_f32 v{t}, v{t}\nv_rcp_f32 v{t+1}, v{t+1}")
        for x, t in z: a(f"v_pk_mul_f32 {pr(x)}, {pr(x)}, {pr(t)}")
        for p, x in enumerate(xs):
            if a_ == 0: a(f"v_pk_mul_f32 {pr(SQ+2*p)}, {pr(x)}, {pr(x)}")
            else:       a(f"v_pk_fma_f32 {pr(SQ+2*p)}, {pr(x)}, {pr(x)}, {pr(SQ+2*p)}")
        for p, x in enumerate(xs):
            if a_ == 1:   a(f"v_pk_add_f32 {pr(SUM+2*p)}, {pr(x-16)}, {pr(x)}")
            elif a_ > 1:  a(f"v_pk_add_f32 {pr(SUM+2*p)}, {pr(SUM+2*p)}, {pr(x)}")
    a("s_nop 0")
    for base in (SQ, SUM):
        for k in range(8):
            a(f"v_add_f32_dpp v{base+k}, v{base+k}, v{base+k} row_ror:8 row_mask:0xf bank_mask:0x3")
            a(f"v_add_f32_dpp v{base+k}, v{base+8+k}, v{base+8+k} row_ror:8 row_mask:0xf bank_mask:0xc")
    O = G
    for sidx, base in ((1, SQ), (0, SUM)):
        for j in range(4):
            a(f"v_add_f32_dpp v{O+2*j+sidx}, v{base+j}, v{base+j} row_half_mirror row_mask:0xf bank_mask:0x5")
            a(f"v_add_f32_dpp v{O+2*j+sidx}, v{base+4+j}, v{base+4+j} row_half_mirror row_mask:0xf bank_mask:0xa")
    order = [1, 3, 5, 7, 0, 2, 4, 6]
    for dpp in ("quad_perm:[1,0,3,2]", "quad_perm:[2,3,0,1]"):
        for k in order: a(f"v_add_f32_dpp v{O+k}, v{O+k}, v{O+k} {dpp} row_mask:0xf bank_mask:0xf")
    a(f"""s_mov_b32 exec_lo, 0x11111111
s_mov_b32 exec_hi, 0x11111111
ds_write_b128 v{VSCW}, v[{O}:{O+3}]
ds_write_b128 v{VSCW}, v[{O+4}:{O+7}] offset:16
s_mov_b64 exec, -1
s_lshl_b32 s40, s38, 8
s_add_u32 s40, s40, {LDS_SC}
v_add_u32 v{T+8}, s40, v{VST}
s_waitcnt lgkmcnt(0)
s_barrier""")
    st.mark(4)
    PL = T
    for n in range(16, 32):
        q0 = []; q1 = []; head = []; pre = []; post = []; start = 0
        if n == 16:
            head = [f"ds_read_b128 v[{T}:{T+3}], v{T+8}", f"ds_read_b128 v[{T+4}:{T+7}], v{T+8} offset:1024"]
            q1 = [f"v_add_f32 v{T+k}, v{T+k}, v{T+4+k}" for k in range(4)]
            q1.append(f"buffer_store_dwordx4 v[{T}:{T+3}], v{VPUB}, s[20:23], 0 offen sc1")
        polls = [f"buffer_load_dwordx2 v[{PL+2*jj}:{PL+2*jj+1}], v{VPOLL}, s[20:23], {'0' if jj < 4 else 's%d' % (47 + (jj >> 2))} offen offset:{(jj&3)*1024} sc1" for jj in range(14)]
        if n == X0: q0 = list(polls)
        if n == X1:
            lab = f"{name}_st"
            def sums():
                L = []
                for k in (0, 1): L.append(f"v_add_f32 v{PL+28+k}, v{PL+k}, v{PL+2+k}")
                for k in (0, 1): L.append(f"v_add_f32 v{PL+30+k}, v{PL+4+k}, v{PL+6+k}")
                for jj in range(4, 14):
                    for k in (0, 1): L.append(f"v_add_f32 v{PL+28+2*(jj&1)+k}, v{PL+28+2*(jj&1)+k}, v{PL+2*jj+k}")
                for k in (0, 1): L.append(f"v_add_f32 v{PL+28+k}, v{PL+28+k}, v{PL+30+k}")
                return L
            S_, Q_ = PL + 28, PL + 29
            q0 = ["s_waitcnt vmcnt(0)"] + sums()
            pre = [f"v_cmp_u_f32 vcc, v{S_}, v{Q_}", f"s_cbranch_vccnz {lab}_slow", f"{lab}_ok:"]
            slow = Asm()
            slow(f"{lab}_slow:\ns_mov_b32 s52, 0x100000\n{lab}_again:\ns_mov_b64 s[54:55], 0")
            for k in range(28): slow(f"v_cmp_eq_u32 vcc, -1, v{PL+k}\ns_or_b64 s[54:55], s[54:55], vcc")
            slow(f"s_cmp_eq_u64 s[54:55], 0\ns_cbranch_scc1 {lab}_done\ns_sub_u32 s52, s52, 1\ns_cmp_eq_u32 s52, 0\ns_cbranch_scc1 {lab}_done\ns_sleep 2")
            slow(polls); slow(f"s_waitcnt vmcnt(0)\ns_branch {lab}_again\n{lab}_done:")
            slow(sums()); slow(f"s_branch {lab}_ok")
            q1 = [f"v_mul_f32 v{S_}, {fhex(1/1792)}, v{S_}", f"v_mul_f32 v{Q_}, {fhex(1/1792)}, v{Q_}",
                  f"v_lshl_add_u32 v{PL}, v0, 3, s47",
                  f"v_fma_f32 v{Q_}, -v{S_}, v{S_}, v{Q_}", f"v_max_f32 v{Q_}, 0, v{Q_}", f"v_add_f32 v{Q_}, 0x3727c5ac, v{Q_}",
                  f"v_rsq_f32 v{PL+2}, v{Q_}", "s_nop 0", f"v_mul_f32 v{PL+3}, v{PL+2}, -v{S_}".replace("v_mul_f32", "v_mul_f32_e64"),
                  f"ds_write_b64 v{PL}, v[{PL+2}:{PL+3}]"]
        if n in (X1 + 1, X1 + 2):
            u = n - X1 - 1
            RS = T; OB = T + 16
            head = [f"ds_read_b128 v[{RS+4*k}:{RS+4*k+3}], v{VRS} offset:{u*256+16*k}" for k in range(4)]
            q = []
            for a_ in range(4):
                for h in range(2):
                    c = ACC_A + 4 * (a_ * 4 + 2 * u + h)
                    for j in range(4):
                        q.append(f"v_fma_f32 v{c+j}, v{c+j}, v{RS+8*h+2*j}, v{RS+8*h+2*j+1}")
                c0 = ACC_A + 4 * (a_ * 4 + 2 * u); o = OB + 4 * a_
                for k in range(4): q.append(f"v_cvt_pk_bf16_f32 v{o+k}, v{c0+2*k}, v{c0+2*k+1}")
                q.append(f"buffer_store_dwordx4 v[{o}:{o+3}], v{VST}, s[24:27], {'s49' if u else '0'} offen offset:{a_*1024} sc1")
            q0 = ["s_waitcnt lgkmcnt(4)"] + q
            q1 = q0; start = 3
        if n == Y:
            pre = ["s_waitcnt vmcnt(0)"]
            q1 = [f"v_mov_b32 v{T}, 1", f"buffer_atomic_add v{T}, v{VCNT}, s[20:23], 0 offen sc1"]
        if n == PZ: q1 = q1 + [f"buffer_load_dword v{T+1}, v{VCNT}, s[20:23], 0 offen sc1"]
        if n == 28:
            lab = f"{name}_cz"
            pre = ["s_waitcnt vmcnt(0)", f"v_readfirstlane_b32 s40, v{T+1}", "s_nop 0", "s_cmp_ge_u32 s40, s46", f"s_cbranch_scc0 {lab}_slow", f"{lab}_ok:"]
            slow(f"""{lab}_slow:
s_mov_b32 s52, 0x100000
{lab}_again:
s_sleep 1
buffer_load_dword v{T+1}, v{VCNT}, s[20:23], 0 offen sc1
s_waitcnt vmcnt(0)
v_readfirstlane_b32 s40, v{T+1}
s_sub_u32 s52, s52, 1
s_cmp_eq_u32 s52, 0
s_cbranch_scc1 {lab}_ok
s_cmp_ge_u32 s40, s46
s_cbranch_scc0 {lab}_again
s_branch {lab}_ok""")
        if n in (29, 30):
            hh = n - 29
            q0 = [f"v_mov_b32 v{ACC_A + 4*(a_*4+tt) + j}, v{BSP+tt}" for a_ in (2*hh, 2*hh+1) for tt in range(4) for j in range(4)]
            q1 = q0
        if n in (16, 17, 18): post = trick(36, n - 16, 1)
        if n >= 29: post = trick(36, n - 16, 2)
        S = stage('B', n % 4, 'G' if n == 31 else 'B', q0, q1, budget=(12 if n in (X1, X1+1, X1+2) else 8), pre_bar=pre, post_bar=post, head=head, start0=start)
        assert not q1 and (q0 is q1 or not q0), (n, q0, q1)
        a(S)
        if n == X1: st.mark(5)
        if n == 28: st.mark(6)
    st.mark(7)
    gq = gelu_plain(list(range(ACC_B, ACC_B + 64)), [T + k for k in range(4)])
    NU = opt.get('NU', 12)
    for n in range(32, 32 + NU):
        a(stage('G', n % 4, 'G', gq, gq, budget=opt.get('gb', 9), post_bar=trick(37, n - 32, 2)))
    assert not gq, len(gq)
    if TR: a(f"s_lshr_b32 s37, s37, {NU}")
    a(f"s_mov_b32 s51, {(28 - NU) // 4}\n{name}_G:")
    for s in range(4): a(stage('G', s, 'G', post_bar=trick(37, s, 2)))
    if TR: a("s_lshr_b32 s37, s37, 4")
    a(f"s_sub_u32 s51, s51, 1\ns_cmp_lg_u32 s51, 0\ns_cbranch_scc1 {name}_G")
    for s in range(4): a(stage('G', s, 'G', last=(s == 3)))
    st.mark(8)
    for h2 in range(2):
        for tt in range(4):
            o = T + 4 * ((h2 * 4 + tt) % 8)
            cs = [4 * ((2 * h2 + e) * 4 + tt) for e in range(2)]
            if h2 == 1 and tt == 3: a("s_nop 2")
            for c in cs:
                for jp in (0, 2): a(f"v_pk_mul_f32 {pr(ACC_A+c+jp)}, {pr(ACC_A+c+jp)}, {pr(ACC_B+c+jp)}")
            for e, c in enumerate(cs):
                for jp in (0, 2): a(f"v_cvt_pk_bf16_f32 v{o+2*e+jp//2}, v{ACC_A+c+jp}, v{ACC_A+c+jp+1}")
            a(f"buffer_store_dwordx4 v[{o}:{o+3}], v{VST}, s[28:31], {'s49' if h2 else '0'} offen offset:{tt*1024} {psc}")
    if opt.get('marks'):
        a("s_waitcnt vmcnt(0)"); st.mark(9); st.flush(10)
    a("s_endpgm")
    a(slow.L); a(ool.L)
    a(f"{name}_helper:")
    if opt.get('noconv'): a("s_endpgm")
    else: conv_helper(a, name, opt, st)
    a(f"{name}_end:\ns_endpgm")
    a(kd(name, vgpr=256, sgpr=100))
    launch = f"; @launch kernel={name} grid=(256,1,1) block=(512,1,1) lds=163840"
    return launch, a.text()
```

```python
from final import *
from k0 import k0
from km import km
from kc import kc
import re
SL = 0x3f00000
def stamp(part, slot):
    launch, text = part
    name = launch.split('kernel=')[1].split()[0]
    pre = f"""{name}:
    s_cmp_lg_u32 s2, 0
    s_cbranch_scc1 {name}_xs
    s_memrealtime s[40:41]
    s_load_dwordx2 s[42:43], s[0:1], {KA['ws']}
    s_waitcnt lgkmcnt(0)
    s_add_u32 s44, s42, {hex(SL)}
    s_addc_u32 s45, s43, 0
    s_and_b32 s45, s45, 0xffff
    s_mov_b32 s46, 4096
    s_mov_b32 s47, 0x20000
    v_mov_b32 v1, s40
    v_mov_b32 v2, {8*slot}
    buffer_store_dword v1, v2, s[44:47], 0 offen
{name}_xs:
"""
    return launch, text.replace(f"{name}:\n", pre, 1)
def spin(a_, b_, n='spin_kernel'):
    a = Asm(); a(header(n))
    a(f"""s_cmp_lg_u32 s2, 0
s_cbranch_scc1 {n}_end
s_memrealtime s[8:9]
s_load_dwordx2 s[4:5], s[0:1], {KA['ws']}
s_waitcnt lgkmcnt(0)
s_add_u32 s4, s4, {hex(SL)}
s_addc_u32 s5, s5, 0
s_load_dword s10, s[4:5], {8*a_}
s_load_dword s11, s[4:5], {8*max(b_,0)}
s_waitcnt lgkmcnt(0)""")
    if b_ < 0: a("s_mov_b32 s11, s8")
    a(f"""s_sub_u32 s12, s11, s10
s_min_u32 s12, s12, 20000
{n}_l:
s_memrealtime s[14:15]
s_waitcnt lgkmcnt(0)
s_sub_u32 s13, s14, s8
s_cmp_lt_u32 s13, s12
s_cbranch_scc1 {n}_l
{n}_end:
s_endpgm""")
    a(kd(n, vgpr=8, sgpr=32))
    return (f"; @launch kernel={n} grid=(1,1,1) block=(64,1,1) lds=0", a.text())
K = [k0(dict(kvnt='nt', pf_early=['z2'])), km(dict(hnt='nt', trickle=(-2, 1, 29, 43, 44))), kc()]
KS = [stamp(p, i) for i, p in enumerate(K)]
write(KS + [spin(0, 0)], "s_zero.s")
write(KS + [spin(0, -1)], "s_all.s")
write(KS + [spin(0, 1)], "s_k0.s")
write(KS + [spin(1, 2)], "s_km.s")
write(KS + [spin(2, -1)], "s_kc.s")
write(K + K, "s_twice.s")
from chk import check
check(KS + [spin(0, -1)])
```

```python
from final import *
from k0 import k0
from km import km
from kc import kc
o0 = dict(kvnt='nt', pf_early=['z2']); o1 = dict(hnt='nt', trickle=(-2, 1, 29, 43, 44))
write([k0(o0), km(o1), kc()], "o_base.s")
write([k0(o0), km(o1), kc(dict(osc='sc1'))], "o_sc1.s")
write([k0(o0), km(o1), kc(dict(osc='nt'))], "o_nt.s")
write([k0(o0), km(o1), kc(dict(osc='sc0 sc1 nt'))], "o_all.s")
write([k0(dict(sc='sc1', **o0)), km(dict(psc='sc1', ysc='sc1', **o1)), kc(dict(osc='sc1'))], "o_sc1x.s")
write([k0(dict(sc='sc0 sc1', **o0)), km(dict(psc='sc0 sc1', ysc='sc0 sc1', **o1)), kc(dict(osc='sc0 sc1'))], "o_sc01x.s")
```
